```python
import torch

def _softmax(x, axis=-1):
    return torch.softmax(x, dim=axis)
def _gelu(x):
    return torch.nn.functional.gelu(x, approximate="tanh")
def _silu(x):
    return torch.nn.functional.silu(x)
def _sigmoid(x):
    return torch.sigmoid(x)
def _layernorm(x, axis=-1, eps=1e-5):
    m = x.mean(dim=axis, keepdim=True)
    v = x.var(dim=axis, keepdim=True, unbiased=False)
    return (x - m) / torch.sqrt(v + eps)
def _scatter_add(tgt, idx, src, axis=0):
    return tgt.clone().index_add_(axis, idx, src)
def _segment_sum(src, seg, n):
    out = torch.zeros((n,) + src.shape[1:], dtype=src.dtype)
    return out.index_add_(0, seg, src)
def _pad(x, pw):
    flat = tuple(v for pair in reversed(pw) for v in pair)
    return torch.nn.functional.pad(x, flat)

kernel_name = 'concat_heads__linear_kernel_hedgehog__spectral_fnet__prompt'

def setup_inputs():

    _w = (lambda a: (lambda t: t.to(torch.bfloat16) if t.is_floating_point() else t)(torch.as_tensor(a)))
    def _A_setup():
        B, S, D, H = 1, 2048, 576, 32
        Dh = D // H
        return {
            "x": _w((lambda *s: torch.randn(*s, dtype=torch.bfloat16) * 0.2)(B, S, D)),
            "wqkv": _w((lambda *s: torch.randn(*s, dtype=torch.bfloat16) * 1.6)(D, 3 * D)),
            "w_phi": _w((lambda *s: torch.randn(*s, dtype=torch.bfloat16) * 1.6)(H, Dh, Dh) * (Dh ** -0.5)),
            "wo": _w((lambda *s: torch.randn(*s, dtype=torch.bfloat16) * 0.8)(D, D)),
        }
    _A_in = _A_setup()

    def _B_setup():
        B, S, D = 1, 2048, 576
        ns = torch.arange(S)[:, None] * torch.arange(S)[None, :]
        nd = torch.arange(D)[:, None] * torch.arange(D)[None, :]
        Ws_re = torch.cos(-2.0 * torch.pi * ns / S).to(float)
        Ws_im = torch.sin(-2.0 * torch.pi * ns / S).to(float)
        Wd_re = torch.cos(-2.0 * torch.pi * nd / D).to(float)
        Wd_im = torch.sin(-2.0 * torch.pi * nd / D).to(float)
        return {
            "x": _w((lambda *s: torch.randn(*s, dtype=torch.bfloat16) * 0.05)(B, S, D)),
            "dft_seq_re": _w(Ws_re),
            "dft_seq_im": _w(Ws_im),
            "dft_hid_re": _w(Wd_re),
            "dft_hid_im": _w(Wd_im),
        }
    _B_in = _B_setup()

    return {
        "A_x": _A_in["x"],
        "A_wqkv": _A_in["wqkv"],
        "A_w_phi": _A_in["w_phi"],
        "A_wo": _A_in["wo"],
        "B_x": _B_in["x"],
        "B_dft_seq_re": _B_in["dft_seq_re"],
        "B_dft_seq_im": _B_in["dft_seq_im"],
        "B_dft_hid_re": _B_in["dft_hid_re"],
        "B_dft_hid_im": _B_in["dft_hid_im"],
    }

def reference(A_x, A_wqkv, A_w_phi, A_wo, B_x, B_dft_seq_re, B_dft_seq_im, B_dft_hid_re, B_dft_hid_im):
    def _A_ref(x, wqkv, w_phi, wo):
        B, S, D = x.shape
        H = 32; Dh = D // H
        qkv = (lambda x, *d: x.permute(*d))((x @ wqkv).reshape(B, S, 3, H, Dh), 2, 0, 3, 1, 4)
        q, k, v = qkv[0], qkv[1], qkv[2]
        pq = torch.einsum("bhsd,hdf->bhsf", q, w_phi)
        pk = torch.einsum("bhsd,hdf->bhsf", k, w_phi)
        phi_q = torch.concatenate([_softmax(pq, axis=-1), _softmax(-pq, axis=-1)], axis=-1)
        phi_k = torch.concatenate([_softmax(pk, axis=-1), _softmax(-pk, axis=-1)], axis=-1)
        kv = torch.einsum("bhsf,bhsd->bhfd", phi_k, v)
        z  = torch.einsum("bhsf->bhf", phi_k)
        num = torch.einsum("bhqf,bhfd->bhqd", phi_q, kv)
        den = torch.einsum("bhqf,bhf->bhq", phi_q, z)[..., None] + 1e-6
        o = num / den
        return (lambda x, *d: x.permute(*d))(o, 0, 2, 1, 3).reshape(B, S, D) @ wo

    def _B_ref(x, dft_seq_re, dft_seq_im, dft_hid_re, dft_hid_im):
        a = torch.einsum("bsd,ed->bse", x, dft_hid_re)
        b = torch.einsum("bsd,ed->bse", x, dft_hid_im)
        y = torch.einsum("ts,bse->bte", dft_seq_re, a) - torch.einsum("ts,bse->bte", dft_seq_im, b)
        return y

    a = _A_ref(A_x, A_wqkv, A_w_phi, A_wo)
    b = _B_ref(B_x, B_dft_seq_re, B_dft_seq_im, B_dft_hid_re, B_dft_hid_im)
    return torch.concatenate([a, b], axis=-1)
```

```python
import re

TRANS = ("v_exp_f32", "v_log_f32", "v_rcp_f32", "v_rsq_f32", "v_sqrt_f32", "v_sin_f32", "v_cos_f32", "v_rcp_iflag_f32")
RMW = ("v_fmac_f32", "v_pk_fmac_f16", "v_dot2c_f32_bf16")

def _regs(tok):
    tok = tok.strip()
    tok = tok.lstrip("-|").rstrip("|")
    m = re.fullmatch(r"abs\((.*)\)", tok)
    if m: tok = m.group(1)
    m = re.fullmatch(r"([vas])(\d+)", tok)
    if m: return {m.group(1) + m.group(2)}
    m = re.fullmatch(r"([vas])\[(\d+):(\d+)\]", tok)
    if m: return {m.group(1) + str(i) for i in range(int(m.group(2)), int(m.group(3)) + 1)}
    if tok in ("vcc", "vcc_lo", "vcc_hi"): return {"vcc"}
    if tok in ("exec", "exec_lo", "exec_hi"): return {"exec"}
    if tok == "m0": return {"m0"}
    return set()

class I:
    __slots__ = ("text", "op", "cls", "wr", "rd", "srcc", "passes", "ws", "data", "lds_dma", "dstD")
    def __init__(self, text):
        self.text = text
        t = text.split(";")[0].strip()
        parts = t.split(None, 1)
        op = parts[0]
        self.op = op
        rest = parts[1] if len(parts) > 1 else ""
        rest = re.sub(r"\b(op_sel|op_sel_hi|neg_lo|neg_hi|quad_perm):\[[^\]]*\]", lambda m: "quad_perm" if m.group(1) == "quad_perm" else "", rest)
        rest = re.sub(r"hwreg\([^)]*\)", "0", rest)
        ops = [x.strip() for x in rest.split(",")] if rest else []
        mods = ""
        if ops:
            l = ops[-1].split()
            ops[-1] = l[0] if l else ""
            mods = " ".join(l[1:])
        self.wr = set(); self.rd = set(); self.srcc = set(); self.passes = 0; self.ws = 1
        self.data = set(); self.lds_dma = False; self.dstD = None
        base = re.sub(r"_(e32|e64|dpp|sdwa)$", "", op)
        if op == "s_nop":
            self.cls = "nop"; self.ws = int(ops[0], 0) + 1
        elif op.startswith("v_mfma"):
            self.cls = "mfma"
            self.wr = _regs(ops[0]); self.rd = _regs(ops[1]) | _regs(ops[2]); self.srcc = _regs(ops[3])
            self.passes = 8 if "32x32" in op else 4
            self.dstD = ops[0]
        elif op.startswith("v_"):
            self.cls = "valu"
            if base.startswith("v_permlane") and "swap" in base:
                self.wr = _regs(ops[0]) | _regs(ops[1]); self.rd = set(self.wr); self.cls = "perm"
            elif base.startswith("v_cmp"):
                self.wr = _regs(ops[0])
                for o in ops[1:]: self.rd |= _regs(o)
            elif base in ("v_add_co_u32", "v_sub_co_u32", "v_addc_co_u32", "v_subb_co_u32", "v_mad_u64_u32"):
                self.wr = _regs(ops[0]) | _regs(ops[1])
                for o in ops[2:]: self.rd |= _regs(o)
            else:
                self.wr = _regs(ops[0])
                for o in ops[1:]: self.rd |= _regs(o)
                if base in RMW or base == "v_writelane_b32": self.rd |= self.wr
                if base in TRANS: self.cls = "trans"
                if base in ("v_readfirstlane_b32", "v_readlane_b32"): self.cls = "rdlane"
                if "dpp" in op or "row_" in mods or "quad_perm" in mods:
                    self.cls = "dpp"; self.rd |= self.wr
        elif op.startswith("ds_"):
            self.cls = "ds"
            if op.startswith("ds_read") or op.startswith("ds_bpermute") or op.startswith("ds_swizzle") or "_rtn" in op:
                self.wr = _regs(ops[0])
                for o in ops[1:]: self.rd |= _regs(o)
            else:
                for o in ops: self.rd |= _regs(o)
        elif op.startswith("buffer_") or op.startswith("global_"):
            self.cls = "vmem"
            islds = (" lds" in (" " + mods)) or "load_lds" in op
            if islds:
                self.lds_dma = True
                for o in ops: self.rd |= _regs(o)
                self.rd.add("m0")
            elif "_load" in op:
                self.wr = _regs(ops[0])
                for o in ops[1:]: self.rd |= _regs(o)
            elif op.startswith("buffer_inv") or op.startswith("buffer_wbl2"):
                pass
            else:
                for o in ops: self.rd |= _regs(o)
                if "atomic" in op and "sc0" in mods.split() and op.startswith("buffer_"):
                    self.wr = _regs(ops[0])
                if "x3" in op or "x4" in op:
                    self.data = _regs(ops[0] if op.startswith("buffer_") else ops[1])
        elif op.startswith("s_"):
            self.cls = "salu"
            if op.startswith(("s_cmp", "s_cbranch", "s_branch", "s_waitcnt", "s_barrier", "s_endpgm", "s_setprio", "s_sleep", "s_bitcmp")):
                for o in ops: self.rd |= _regs(o)
            else:
                self.wr = _regs(ops[0]) if ops else set()
                for o in ops[1:]: self.rd |= _regs(o)
                if "saveexec" in op: self.wr.add("exec")
        else:
            raise ValueError("unknown instr: " + text)

VALU = ("valu", "trans", "perm", "rdlane", "dpp")

def need(p, c):
    n = 0
    pv = p.cls in VALU
    cv = c.cls in VALU
    if pv:
        wv = {r for r in p.wr if r[0] in "va" and r != "vcc"}
        wsg = {r for r in p.wr if r[0] == "s" or r == "vcc"}
        if c.cls == "mfma" and wv & (c.rd | c.srcc): n = max(n, 2)
        if c.cls in ("perm", "dpp") and wv & c.rd: n = max(n, 2)
        if c.cls == "rdlane" and wv & c.rd: n = max(n, 1)
        if p.cls == "trans" and cv and c.cls != "trans" and wv & c.rd: n = max(n, 1)
        if p.cls == "trans" and c.cls == "trans" and wv & c.rd: n = max(n, 1)
        if wsg:
            if cv and wsg & c.rd: n = max(n, 4 if c.cls == "rdlane" or "writelane" in c.op else 2)
            if c.cls == "vmem" and wsg & c.rd: n = max(n, 5)
            if c.cls == "salu" and wsg & c.rd: n = max(n, 1)
        if (("op_sel" in p.text and not p.op.startswith("v_pk_")) or "sdwa" in p.op) and cv and wv & (c.rd | c.wr): n = max(n, 1)
    if p.cls == "mfma":
        big = 12 if p.passes == 8 else 8
        if c.cls == "mfma":
            if p.wr & c.rd: n = max(n, big)
            if p.wr & c.srcc:
                if not (p.wr == c.srcc and p.passes == c.passes): n = max(n, big - 2)
            if p.wr & c.wr and not (p.wr == c.srcc and p.passes == c.passes):
                n = max(n, big - 2)
        else:
            if p.wr & (c.rd | c.wr): n = max(n, big)
        if cv and p.srcc & c.wr: n = max(n, 7 if p.passes == 8 else 3)
        if c.cls in ("ds", "vmem") and p.srcc & c.wr: n = max(n, 7 if p.passes == 8 else 3)
    if p.cls == "salu" and "m0" in p.wr and c.lds_dma: n = max(n, 1)
    if p.data and (p.data & c.wr): n = max(n, 2)
    return n

class Asm:
    def __init__(self):
        self.lines = []
        self.hist = []
        self.nops = 0
        self.count = 0
    def raw(self, text):
        self.lines.append(text)
    def comment(self, t):
        self.lines.append("  ; " + t)
    def label(self, name, pad=True):
        self.lines.append(name + ":")
    def fence(self, n=12):
        k = n
        while k > 0:
            self.e(f"s_nop {min(k,16)-1}"); k -= 16
    def e(self, text):
        for t in text.split("\n"):
            t = t.strip()
            if not t or t.startswith(";"): continue
            if t.endswith(":"):
                self.label(t[:-1]); continue
            ins = I(t)
            dist = 0; pad = 0
            for p in reversed(self.hist):
                nd = need(p, ins)
                if nd > dist: pad = max(pad, nd - dist)
                dist += p.ws
                if dist >= 20: break
            if pad > 0:
                nop = I(f"s_nop {pad-1}")
                self.lines.append(f"  s_nop {pad-1}")
                self.hist.append(nop); self.nops += 1
            self.lines.append("  " + t)
            self.hist.append(ins); self.count += 1
            if len(self.hist) > 64: self.hist = self.hist[-40:]
    def text(self):
        return "\n".join(self.lines) + "\n"

def vr(b, n=1, p="v"):
    return f"{p}{b}" if n == 1 else f"{p}[{b}:{b+n-1}]"
def sr(b, n=1):
    return vr(b, n, "s")

class Alloc:
    def __init__(self, lo, hi):
        self.free = [True] * hi
        for i in range(lo): self.free[i] = False
        self.hi = hi; self.max = lo
    def get(self, n=1, align=None):
        if align is None: align = 1 if n == 1 else (2 if n < 4 else 4)
        i = 0
        while i + n <= self.hi:
            if i % align == 0 and all(self.free[i:i+n]):
                for j in range(i, i+n): self.free[j] = False
                self.max = max(self.max, i+n)
                return i
            i += 1
        raise RuntimeError("out of registers")
    def put(self, b, n=1):
        for j in range(b, b+n):
            assert not self.free[j]
            self.free[j] = True
```

```python
import sys, math
from asmb import *

NAME = "concat_heads__linear_kernel_hedgehog__spectral_fnet__prompt"
WS_Q = 0
WS_PART = 4 << 20
WS_O = 8 << 20
WS_OL = WS_O + (2 << 20)
WS_G = 12 << 20
WS_SIZE = 16 << 20
WS_STAMP = 32 << 20
OOB = 0x40000000
LOG2E = 0x3fb8aa3b
STAMPS = False

S_AX, S_W, S_WPHI, S_WO, S_BX, S_WS, S_HRE, S_HIM, S_OUT, S_DBG = 4, 6, 8, 10, 12, 14, 16, 18, 20, 22
R_X, R_W, R_WS, R_P, R_OUT = 24, 28, 32, 36, 40
S_WAVE = 44
S_L = 46
S_T = 48
S_ST = 76

class K:
    def __init__(self, a, name, nwg):
        self.a = a; self.name = name; self.nst = 0
        a.raw(f".globl {name}\n.p2align 8\n.type {name},@function\n{name}:")
        a.hist = []
        a.e(f"s_cmp_ge_u32 s2, {nwg}")
        a.e(f"s_cbranch_scc1 L_end_{name}")
        self.stamp()
        a.e("s_load_dwordx8 s[4:11], s[0:1], 0")
        a.e("s_load_dwordx2 s[12:13], s[0:1], 32")
        a.e("s_load_dwordx4 s[16:19], s[0:1], 56")
        a.e("s_load_dwordx4 s[20:23], s[0:1], 72")
        a.e("s_load_dwordx2 s[14:15], s[0:1], 88")
    def stamp(self, i=None):
        if not STAMPS: return
        if i is None: i = self.nst
        self.nst = max(self.nst, i + 1)
        assert i < 12
        self.a.e(f"s_memtime s[{S_ST+2*i}:{S_ST+2*i+1}]")
    def end(self, slot, vgpr, acc):
        a = self.a
        a.label(f"L_fin_{self.name}")
        if STAMPS:
            a.e("s_waitcnt vmcnt(0) lgkmcnt(0)")
            a.e(f"s_memtime s[{S_ST+22}:{S_ST+23}]")
            a.e(f"s_memrealtime s[{S_ST+24}:{S_ST+25}]")
            a.e("s_waitcnt lgkmcnt(0)")
            a.e("s_mov_b64 exec, 1")
            a.e(f"s_lshl_b32 s48, s2, 2\ns_add_u32 s48, s48, s{S_WAVE}\ns_lshl_b32 s48, s48, 6\ns_add_u32 s48, s48, {WS_STAMP + slot*(1<<20)}")
            a.e("v_mov_b32 v1, s48")
            for i in range(13):
                if i < 12 and i > 0: a.e(f"s_sub_u32 s{S_ST+2*i}, s{S_ST+2*i}, s{S_ST}")
                a.e(f"v_mov_b32 v2, s{S_ST+2*i}")
                a.e(f"global_store_dword v1, v2, s[{S_WS}:{S_WS+1}] offset:{4*i}")
            a.e("s_waitcnt vmcnt(0)")
        a.label(f"L_end_{self.name}")
        a.e("s_endpgm")
        a.raw(f""".section .rodata,"a"
.p2align 6
.amdhsa_kernel {self.name}
  .amdhsa_next_free_vgpr {vgpr}
  .amdhsa_next_free_sgpr 102
  .amdhsa_accum_offset {acc}
  .amdhsa_group_segment_fixed_size 0
  .amdhsa_kernarg_size 96
  .amdhsa_user_sgpr_count 2
  .amdhsa_user_sgpr_kernarg_segment_ptr 1
  .amdhsa_system_sgpr_workgroup_id_x 1
.end_amdhsa_kernel
.text""")

def srd(a, d, base, nbytes):
    a.e(f"s_mov_b32 s{d}, s{base}\ns_and_b32 s{d+1}, s{base+1}, 0xffff\ns_mov_b32 s{d+2}, {nbytes}\ns_mov_b32 s{d+3}, 0x20000")

def divc(a, dst, src, c, maxv):
    for sh in range(8, 24):
        m = (1 << sh) // c + 1
        if m < (1 << 24) and m * maxv < (1 << 32) and all((x * m) >> sh == x // c for x in range(maxv + 1)):
            a.e(f"v_mul_u32_u24 v{dst}, {m}, v{src}\nv_lshrrev_b32 v{dst}, {sh}, v{dst}")
            return
    raise RuntimeError("no magic")

def interleave(a, main, fill, start=0, per=None):
    fill = list(fill)
    n = len(main)
    if per is None: per = max(1, -(-len(fill) // max(1, n - start)))
    for i, m in enumerate(main):
        a.e(m)
        if i >= start:
            for _ in range(per):
                if fill: a.e(fill.pop(0))
    for f in fill: a.e(f)

def wphi_dma(a, V, lane, nheads, s_head0, lds_base):
    tot = nheads * 240
    n = -(-tot // 256)
    t0, t1, t2, t3 = V.get(), V.get(), V.get(), V.get()
    a.e(f"s_mul_i32 s{S_T}, s{s_head0}, 648")
    for i in range(n):
        a.e(f"s_lshl_b32 s{S_T+1}, s{S_WAVE}, 6\ns_add_u32 s{S_T+1}, s{S_T+1}, {i*256}")
        a.e(f"v_add_u32 v{t0}, s{S_T+1}, v{lane}")
        divc(a, t1, t0, 10, 1024)
        a.e(f"v_mul_u32_u24 v{t2}, 10, v{t1}\nv_sub_u32 v{t0}, v{t0}, v{t2}")
        divc(a, t2, t1, 24, 103)
        a.e(f"v_mul_u32_u24 v{t3}, 24, v{t2}\nv_sub_u32 v{t1}, v{t1}, v{t3}")
        a.e(f"v_mul_u32_u24 v{t2}, 648, v{t2}\nv_mad_u32_u24 v{t2}, v{t1}, 36, v{t2}\nv_lshl_add_u32 v{t2}, v{t0}, 2, v{t2}")
        a.e(f"v_cmp_gt_u32 vcc, 18, v{t1}\nv_cmp_gt_u32 s[{S_T+2}:{S_T+3}], 9, v{t0}")
        a.e(f"s_and_b64 vcc, vcc, s[{S_T+2}:{S_T+3}]")
        a.e(f"v_mov_b32 v{t3}, {OOB}\nv_cndmask_b32 v{t2}, v{t3}, v{t2}, vcc")
        a.e(f"s_lshl_b32 s{S_T+1}, s{S_WAVE}, 8\ns_add_u32 m0, s{S_T+1}, {lds_base + i*1024}")
        a.e(f"buffer_load_dword v{t2}, s[{R_P}:{R_P+3}], s{S_T} offen lds")
    for t in (t0, t1, t2, t3): V.put(t)
    return n

def wphi_frags(a, V, lane, nx, hstride, lds_base):
    am, ax, t = V.get(), V.get(), V.get()
    a.e(f"v_and_b32 v{t}, 1, v{lane}\nv_mul_u32_u24 v{ax}, {960*hstride}, v{t}")
    a.e(f"v_bfe_u32 v{t}, v{lane}, 2, 2\nv_mad_u32_u24 v{ax}, v{t}, 40, v{ax}")
    a.e(f"v_add_u32 v{ax}, {lds_base}, v{ax}")
    a.e(f"v_bfe_u32 v{t}, v{lane}, 4, 1\nv_lshl_add_u32 v{am}, v{t}, 4, v{ax}")
    a.e(f"v_bfe_u32 v{t}, v{lane}, 1, 1\nv_lshl_add_u32 v{am}, v{t}, 3, v{am}")
    F = [[[V.get(4) for w in range(3)] for T in range(2)] for X in range(nx)]
    cnt = 0
    for X in range(nx):
        for T in range(2):
            for w in range(3):
                for u in range(2):
                    off = X*960 + (8*w + 4*u)*40 + (32 if T else 0)
                    a.e(f"ds_read_b64_tr_b16 {vr(F[X][T][w]+2*u,2)}, v{ax if T else am} offset:{off}")
                    cnt += 1
                    if cnt % 12 == 0: a.e("s_waitcnt lgkmcnt(0)")
    a.e(f"v_bfe_u32 v{t}, v{lane}, 2, 1\nv_lshrrev_b32 v{am}, 5, v{lane}\nv_cmp_eq_u32 vcc, v{t}, v{am}")
    a.e("s_waitcnt lgkmcnt(0)")
    for X in range(nx):
        for T in range(2):
            for w in range(3):
                for i in range(4):
                    r = F[X][T][w] + i
                    a.e(f"v_cndmask_b32 v{r}, 0, v{r}, vcc")
    for x in (am, ax, t): V.put(x)
    return F

def softmax2(a, V, T, Tx, outp, outn):
    p = [T + i for i in range(16)] + [Tx, Tx + 1]
    c = V.get(2); E = V.get(18, 2); N = V.get(18, 2); S = V.get(4, 2)
    mx, mn = c, c + 1
    a.e(f"v_max3_f32 v{mx}, v{p[0]}, v{p[1]}, v{p[2]}")
    a.e(f"v_min3_f32 v{mn}, v{p[0]}, v{p[1]}, v{p[2]}")
    for i in range(3, 17, 2):
        a.e(f"v_max3_f32 v{mx}, v{mx}, v{p[i]}, v{p[i+1]}")
        a.e(f"v_min3_f32 v{mn}, v{mn}, v{p[i]}, v{p[i+1]}")
    a.e(f"v_max_f32 v{mx}, v{mx}, v{p[17]}")
    a.e(f"v_min_f32 v{mn}, v{mn}, v{p[17]}")
    a.e(f"v_pk_mul_f32 {vr(c,2)}, {vr(c,2)}, s[{S_L}:{S_L+1}] neg_lo:[1,0]")
    for i in range(9):
        a.e(f"v_pk_fma_f32 {vr(E+2*i,2)}, {vr(p[2*i],2)}, s[{S_L}:{S_L+1}], {vr(c,2)} op_sel_hi:[1,1,0]")
        a.e(f"v_pk_fma_f32 {vr(N+2*i,2)}, {vr(p[2*i],2)}, s[{S_L}:{S_L+1}], {vr(c,2)} op_sel:[0,0,1] neg_lo:[1,0,0] neg_hi:[1,0,0]")
    for i in range(18):
        a.e(f"v_exp_f32 v{E+i}, v{E+i}")
        a.e(f"v_exp_f32 v{N+i}, v{N+i}")
    a.e(f"v_pk_add_f32 {vr(S,2)}, {vr(E,2)}, {vr(E+2,2)}")
    a.e(f"v_pk_add_f32 {vr(S+2,2)}, {vr(N,2)}, {vr(N+2,2)}")
    for i in range(2, 9):
        a.e(f"v_pk_add_f32 {vr(S,2)}, {vr(S,2)}, {vr(E+2*i,2)}")
        a.e(f"v_pk_add_f32 {vr(S+2,2)}, {vr(S+2,2)}, {vr(N+2*i,2)}")
    a.e(f"v_add_f32 v{S}, v{S}, v{S+1}")
    a.e(f"v_add_f32 v{S+1}, v{S+2}, v{S+3}")
    a.e(f"v_rcp_f32 v{S}, v{S}")
    a.e(f"v_rcp_f32 v{S+1}, v{S+1}")
    for i in range(9):
        a.e(f"v_pk_mul_f32 {vr(E+2*i,2)}, {vr(E+2*i,2)}, {vr(S,2)} op_sel_hi:[1,0]")
        a.e(f"v_pk_mul_f32 {vr(N+2*i,2)}, {vr(N+2*i,2)}, {vr(S,2)} op_sel:[0,1]")
    for i in range(9):
        a.e(f"v_cvt_pk_bf16_f32 v{outp+i}, v{E+2*i}, v{E+2*i+1}")
        a.e(f"v_cvt_pk_bf16_f32 v{outn+i}, v{N+2*i}, v{N+2*i+1}")
    V.put(c, 2); V.put(E, 18); V.put(N, 18); V.put(S, 4)

NS = 4
SLOT = 36864
LDS_MISC = NS * SLOT
S_XB, S_WB, S_WSTEP, S_CI, S_XC, S_WC = 56, 57, 58, 59, 60, 61
S_RB, S_CB, S_ROLE = 62, 63, 64

def dma_chunk(c, vx, vw, xstep):
    base = (c % NS) * SLOT
    g = []
    pre = f"s_lshl_b32 s{S_XC}, s{S_CI}, 7\ns_add_u32 s{S_XC}, s{S_XC}, s{S_XB}\ns_mul_i32 s{S_WC}, s{S_CI}, s{S_WSTEP}\ns_add_u32 s{S_WC}, s{S_WC}, s{S_WB}\n"
    pre += f"s_add_u32 s{S_CI}, s{S_CI}, 1\ns_cmp_eq_u32 s{S_CI}, 9\ns_cselect_b32 s{S_CI}, 0, s{S_CI}\n"
    for i in range(4):
        t = pre if i == 0 else f"s_add_u32 s{S_XC}, s{S_XC}, {xstep}\n"
        t += f"s_add_u32 m0, s65, {base + i*1024}\n"
        t += f"buffer_load_dwordx4 v{vx[i&1]}, s[{R_X}:{R_X+3}], s{S_XC} offen lds"
        g.append(t)
    for j in range(5):
        g.append(f"s_add_u32 m0, s66, {base + 16384 + j*1024}\nbuffer_load_dwordx4 v{vw[j]}, s[{R_W}:{R_W+3}], s{S_WC} offen lds")
    return g

def k1(a, rot):
    k = K(a, "p1_kernel", 256)
    V = Alloc(1, 256)
    lane = V.get(); t0 = V.get(); t1 = V.get(); t2 = V.get(); t3 = V.get()
    a.e(f"v_and_b32 v{lane}, 63, v0\nv_lshrrev_b32 v{t0}, 6, v0\nv_readfirstlane_b32 s{S_WAVE}, v{t0}")
    a.e("s_and_b32 s48, s2, 7\ns_lshr_b32 s49, s2, 3")
    a.e(f"s_and_b32 s{S_RB}, s48, 3\ns_lshl_b32 s{S_RB}, s{S_RB}, 2\ns_and_b32 s50, s49, 3\ns_add_u32 s{S_RB}, s{S_RB}, s50")
    a.e("s_lshr_b32 s51, s48, 2\ns_lshr_b32 s52, s49, 2")
    if rot:
        a.e(f"s_mul_i32 s{S_CI}, s50, {rot[0]}\ns_mul_i32 s53, s52, {rot[1]}\ns_add_u32 s{S_CI}, s{S_CI}, s53")
        a.e(f"s_mul_i32 s53, s{S_CI}, 7282\ns_lshr_b32 s53, s53, 16\ns_mul_i32 s53, s53, 9\ns_sub_u32 s{S_CI}, s{S_CI}, s53")
    else:
        a.e(f"s_mov_b32 s{S_CI}, 0")
    a.e(f"s_lshl_b32 s65, s{S_WAVE}, 12\ns_mul_i32 s66, s{S_WAVE}, 5120")
    a.e(f"s_mov_b32 s{S_L}, {LOG2E}\ns_mov_b32 s{S_L+1}, {LOG2E}")
    vx = [V.get(), V.get()]; vw = [V.get() for _ in range(5)]
    swz = V.get()
    a.e(f"v_and_b32 v{t0}, 7, v{lane}\nv_lshrrev_b32 v{t1}, 4, v{lane}\nv_xor_b32 v{t0}, v{t0}, v{t1}\nv_lshlrev_b32 v{swz}, 4, v{t0}")
    a.e(f"v_lshrrev_b32 v{t3}, 3, v{lane}")
    a.e("s_cmp_ge_u32 s49, 24\ns_cbranch_scc1 L_b1")
    a.e(f"v_mul_u32_u24 v{t0}, 1152, v{t3}\nv_add_u32 v{vx[0]}, v{t0}, v{swz}\nv_xor_b32 v{vx[1]}, 64, v{vx[0]}")
    a.e(f"s_lshl_b32 s53, s{S_RB}, 2\ns_add_u32 s53, s53, s{S_WAVE}\ns_mul_i32 s{S_XB}, s53, 36864")
    a.e(f"s_mov_b32 s{S_WSTEP}, {64*3456}")
    a.e(f"s_cmp_ge_u32 s49, 16\ns_cselect_b32 s{S_ROLE}, 1, 0\ns_cbranch_scc1 L_qsetup")
    a.e(f"s_lshl_b32 s{S_CB}, s51, 2\ns_add_u32 s{S_CB}, s{S_CB}, s52\ns_mul_i32 s{S_WB}, s{S_CB}, 144")
    for j in range(5):
        a.e(f"s_mul_i32 s53, s{S_WAVE}, 320\ns_add_u32 s53, s53, {j*64}\nv_add_u32 v{t0}, s53, v{lane}")
        divc(a, t1, t0, 20, 1280)
        a.e(f"v_mul_u32_u24 v{t2}, 20, v{t1}\nv_sub_u32 v{t0}, v{t0}, v{t2}")
        a.e(f"v_mul_u32_u24 v{t1}, 3456, v{t1}")
        divc(a, t2, t0, 5, 20)
        a.e(f"v_mul_u32_u24 v{t3}, 5, v{t2}\nv_sub_u32 v{t0}, v{t0}, v{t3}")
        a.e(f"v_lshlrev_b32 v{t0}, 4, v{t0}\nv_min_u32 v{t0}, 56, v{t0}\nv_add_u32 v{t1}, v{t1}, v{t0}")
        a.e(f"v_and_b32 v{t0}, 1, v{t2}\nv_mul_u32_u24 v{t0}, 1152, v{t0}\nv_lshrrev_b32 v{t2}, 1, v{t2}\nv_mul_u32_u24 v{t2}, 72, v{t2}")
        a.e(f"v_add3_u32 v{vw[j]}, v{t1}, v{t0}, v{t2}\nv_add_u32 v{vw[j]}, 1152, v{vw[j]}")
    a.e("s_branch L_ago")
    a.label("L_qsetup")
    a.e(f"s_lshl_b32 s{S_CB}, s51, 1\ns_and_b32 s53, s52, 1\ns_add_u32 s{S_CB}, s{S_CB}, s53\ns_mul_i32 s{S_WB}, s{S_CB}, 288")
    for j in range(5):
        a.e(f"s_mul_i32 s53, s{S_WAVE}, 320\ns_add_u32 s53, s53, {j*64}\nv_add_u32 v{t0}, s53, v{lane}")
        divc(a, t1, t0, 10, 1280)
        a.e(f"v_mul_u32_u24 v{t2}, 10, v{t1}\nv_sub_u32 v{t0}, v{t0}, v{t2}")
        a.e(f"v_and_b32 v{t2}, 1, v{t1}\nv_lshrrev_b32 v{t1}, 1, v{t1}\nv_mul_u32_u24 v{t1}, 3456, v{t1}\nv_mul_u32_u24 v{t2}, 144, v{t2}")
        a.e(f"v_cmp_gt_u32 vcc, 9, v{t0}\nv_lshlrev_b32 v{t0}, 4, v{t0}\nv_add3_u32 v{t1}, v{t1}, v{t0}, v{t2}")
        a.e(f"v_mov_b32 v{t3}, {OOB}\nv_cndmask_b32 v{vw[j]}, v{t3}, v{t1}, vcc")
    a.label("L_ago")
    a.e("s_waitcnt lgkmcnt(0)")
    srd(a, R_X, S_AX, 2048*1152); srd(a, R_W, S_W, 576*3456); srd(a, R_WS, S_WS, WS_SIZE); srd(a, R_P, S_WPHI, 32*648)
    k.stamp(1)
    for c in range(NS - 1):
        for g in dma_chunk(c, vx, vw, 9216): a.e(g)
    a.e(f"s_lshl_b32 s67, s{S_CB}, 2")
    nwp = wphi_dma(a, V, lane, 4, 67, LDS_MISC)
    xa = [V.get() for _ in range(4)]; wa = V.get()
    xs = [V.get() for _ in range(4)]; ws_ = V.get()
    a.e(f"v_and_b32 v{t0}, 31, v{lane}\nv_lshrrev_b32 v{t1}, 5, v{lane}\nv_bfe_u32 v{t2}, v{lane}, 1, 3\nv_xor_b32 v{t1}, v{t1}, v{t2}")
    a.e(f"v_lshlrev_b32 v{t0}, 7, v{t0}\nv_lshl_add_u32 v{t0}, v{t1}, 4, v{t0}\nv_add_u32 v{xa[0]}, s65, v{t0}")
    for ks in range(1, 4): a.e(f"v_xor_b32 v{xa[ks]}, {32*ks}, v{xa[0]}")
    a.e(f"v_lshrrev_b32 v{t0}, 5, v{lane}\nv_bfe_u32 v{t1}, v{lane}, 2, 2\nv_lshl_add_u32 v{t0}, v{t0}, 3, v{t1}\nv_mul_u32_u24 v{t0}, 320, v{t0}")
    a.e(f"v_and_b32 v{t1}, 1, v{lane}\nv_mul_u32_u24 v{t1}, 160, v{t1}\nv_bfe_u32 v{t2}, v{lane}, 4, 1\nv_lshl_add_u32 v{t1}, v{t2}, 4, v{t1}")
    a.e(f"v_bfe_u32 v{t2}, v{lane}, 1, 1\nv_lshl_add_u32 v{t1}, v{t2}, 3, v{t1}\nv_add3_u32 v{wa}, v{t0}, v{t1}, 0\nv_add_u32 v{wa}, 16384, v{wa}")
    acc = V.get(80, 4)
    FX = [V.get(4), V.get(4)]; FW = [V.get(20, 4), V.get(20, 4)]
    def reads(s):
        c, ks = divmod(s, 4); b = s & 1
        r = []
        if ks == 0:
            base = (c % NS) * SLOT
            pre = "\n".join(f"v_add_u32 v{xs[i]}, {base}, v{xa[i]}" for i in range(4)) + f"\nv_add_u32 v{ws_}, {base}, v{wa}\n"
        else: pre = ""
        r.append(pre + f"ds_read_b128 {vr(FX[b],4)}, v{xs[ks]}")
        for t in range(5):
            for u in range(2):
                r.append(f"ds_read_b64_tr_b16 {vr(FW[b]+4*t+2*u,2)}, v{ws_} offset:{(16*ks+4*u)*320 + 32*t}")
        return r
    q = []
    for c in range(NS - 1): q += [("c", c)] * 9
    q += [("p", 0)] * nwp
    def wait_chunk(c, also_p=False):
        last = max(i for i, x in enumerate(q) if x == ("c", c) or (also_p and x[0] == "p"))
        a.e(f"s_waitcnt vmcnt({len(q) - 1 - last})")
    wait_chunk(0); a.e("s_barrier")
    k.stamp(2)
    for r in reads(0): a.e(r)
    pend = []
    for s in range(36):
        c, ks = divmod(s, 4); b = s & 1
        fill = []
        if s + 1 < 36:
            if ks == 3:
                wait_chunk(c + 1, also_p=(c + 1 == NS - 1)); a.e("s_barrier")
                nc = c - 1 + NS
                if c == 0: nc = NS - 1
                elif True: nc = c - 1 + NS
                if nc < 9 and not any(x == ("c", nc) for x in q) :
                    pend = dma_chunk(nc, vx, vw, 9216); q += [("c", nc)] * 9
            fill = reads(s + 1)
        a.e("s_waitcnt lgkmcnt(0)")
        mf = [f"v_mfma_f32_32x32x16_bf16 {vr(acc+16*t,16)}, {vr(FW[b]+4*t,4)}, {vr(FX[b],4)}, {'0' if s == 0 else vr(acc+16*t,16)}" for t in range(5)]
        seq = []
        for t in range(5):
            seq.append(mf[t])
            if t < 3: seq += fill[4*t:4*t+4]
            else:
                for _ in range(2 if t == 3 else 1):
                    if pend: seq.append(pend.pop(0))
        for x in seq: a.e(x)
        if ks == 2:
            while pend: a.e(pend.pop(0))
    k.stamp(3)
    for x in FX: V.put(x, 4)
    for x in FW: V.put(x, 20)
    for x in xa + xs + [wa, ws_]: V.put(x)
    a.e(f"s_cmp_eq_u32 s{S_ROLE}, 1\ns_cbranch_scc1 L_qepi")
    hist_save = list(a.hist)
    import copy
    V2 = copy.deepcopy(V)
    F = wphi_frags(a, V, lane, 2, 2, LDS_MISC)
    pos = lambda kk: kk if kk < 32 else kk + 4
    P = V.get(22, 2)
    PH = V.get(56, 4)
    for X in range(2):
        for i in range(9):
            a.e(f"v_cvt_pk_bf16_f32 v{P+10*X+i}, v{acc+pos(18*X+2*i)}, v{acc+pos(18*X+2*i+1)}")
    for r in (9, 19, 20, 21): a.e(f"v_mov_b32 v{P+r}, 0")
    for X in range(2):
        for i in range(9):
            a.e(f"v_cvt_pk_bf16_f32 v{PH+36+10*X+i}, v{acc+40+pos(18*X+2*i)}, v{acc+40+pos(18*X+2*i+1)}")
        a.e(f"v_mov_b32 v{PH+36+10*X+9}, 0x3f80")
    V.put(acc, 80)
    T = [V.get(16, 4), V.get(16, 4)]; Tx = [V.get(16, 4), V.get(16, 4)]
    for X in range(2):
        for (D, tt) in ((T[X], 0), (Tx[X], 1)):
            for w in range(3):
                a.e(f"v_mfma_f32_32x32x16_bf16 {vr(D,16)}, {vr(F[X][tt][w],4)}, {vr(P+10*X+4*w,4)}, {'0' if w == 0 else vr(D,16)}")
    for X in range(2):
        for tt in range(2):
            for w in range(3): V.put(F[X][tt][w], 4)
    V.put(P, 22)
    k.stamp(4)
    for X in range(2):
        softmax2(a, V, T[X], Tx[X], PH + 18*X, PH + 18*X + 9)
    k.stamp(5)
    for X in range(2): V.put(T[X], 16); V.put(Tx[X], 16)
    a.e(f"v_and_b32 v{t0}, 31, v{lane}\ns_lshl_b32 s53, s{S_WAVE}, 5\nv_add_u32 v{t0}, s53, v{t0}\nv_mul_u32_u24 v{t0}, 464, v{t0}")
    a.e(f"v_lshrrev_b32 v{t1}, 5, v{lane}\nv_mul_u32_u24 v{t1}, 224, v{t1}\nv_add_u32 v{t0}, v{t0}, v{t1}")
    a.e("s_barrier")
    for i in range(14):
        a.e(f"ds_write_b128 v{t0}, {vr(PH+4*i,4)} offset:{16*i}")
    a.e(f"v_bfe_u32 v{t1}, v{lane}, 2, 3\nv_lshrrev_b32 v{t2}, 5, v{lane}\nv_lshl_add_u32 v{t1}, v{t2}, 3, v{t1}\nv_mul_u32_u24 v{t1}, 928, v{t1}")
    a.e(f"v_and_b32 v{t2}, 3, v{lane}\nv_lshl_add_u32 v{t1}, v{t2}, 3, v{t1}")
    a.e(f"s_lshr_b32 s53, s{S_WAVE}, 1\ns_mul_i32 s53, s53, 224\ns_and_b32 s54, s{S_WAVE}, 1\ns_mul_i32 s55, s54, 72\ns_add_u32 s55, s55, s53")
    a.e(f"s_mul_i32 s54, s54, 40\ns_add_u32 s54, s54, s53\ns_add_u32 s54, s54, 144")
    a.e(f"v_add_u32 v{t2}, s54, v{t1}\nv_add_u32 v{t1}, s55, v{t1}")
    a.e("s_waitcnt lgkmcnt(0)\ns_barrier")
    FA = [V.get(12, 4) for _ in range(4)]; FB = [V.get(8, 4) for _ in range(4)]
    KV = V.get(24, 4)
    for ks in range(4):
        for t in range(3):
            for u in range(2):
                a.e(f"ds_read_b64_tr_b16 {vr(FA[ks]+4*t+2*u,2)}, v{t1} offset:{(32*ks+u)*464 + 32*t}")
        for t in range(2):
            for u in range(2):
                a.e(f"ds_read_b64_tr_b16 {vr(FB[ks]+4*t+2*u,2)}, v{t2} offset:{(32*ks+u)*464 + 32*t}")
        if ks >= 1:
            a.e("s_waitcnt lgkmcnt(10)")
            for t in range(3):
                for u in range(2):
                    D = KV + 4*(2*t+u)
                    a.e(f"v_mfma_f32_16x16x32_bf16 {vr(D,4)}, {vr(FA[ks-1]+4*t,4)}, {vr(FB[ks-1]+4*u,4)}, {'0' if ks == 1 else vr(D,4)}")
    a.e("s_waitcnt lgkmcnt(0)")
    for t in range(3):
        for u in range(2):
            D = KV + 4*(2*t+u)
            a.e(f"v_mfma_f32_16x16x32_bf16 {vr(D,4)}, {vr(FA[3]+4*t,4)}, {vr(FB[3]+4*u,4)}, {vr(D,4)}")
    o = [V.get() for _ in range(4)]
    a.e(f"v_and_b32 v{t0}, 15, v{lane}\nv_lshrrev_b32 v{t1}, 4, v{lane}\nv_mul_u32_u24 v{t2}, 320, v{t1}\nv_lshl_add_u32 v{o[0]}, v{t0}, 4, v{t2}")
    a.e(f"v_mov_b32 v{t3}, {OOB}\nv_cmp_gt_u32 vcc, 4, v{t0}\nv_cndmask_b32 v{o[1]}, v{t3}, v{o[0]}, vcc")
    a.e(f"v_cmp_eq_u32 vcc, 0, v{t1}\nv_cndmask_b32 v{o[2]}, v{t3}, v{o[0]}, vcc\nv_cndmask_b32 v{o[3]}, v{t3}, v{o[1]}, vcc")
    a.e(f"s_lshl_b32 s53, s{S_CB}, 1\ns_lshr_b32 s54, s{S_WAVE}, 1\ns_add_u32 s53, s53, s54\ns_lshl_b32 s53, s53, 4\ns_add_u32 s53, s53, s{S_RB}\ns_mul_i32 s53, s53, 5760")
    a.e(f"s_and_b32 s54, s{S_WAVE}, 1\ns_mul_i32 s54, s54, 2880\ns_add_u32 s53, s53, s54\ns_add_u32 s53, s53, {WS_PART}")
    for t in range(3):
        for u in range(2):
            D = KV + 4*(2*t+u)
            a.e(f"buffer_store_dwordx4 {vr(D,4)}, v{o[(2 if t == 2 else 0)+u]}, s[{R_WS}:{R_WS+3}], s53 offen offset:{t*1280 + u*256}")
    k.stamp(6)
    a.e(f"s_branch L_fin_{k.name}")
    vmax = V.max
    V = V2
    a.label("L_qepi"); a.hist = hist_save
    Q = V.get(40, 2)
    for X in range(4):
        for i in range(9):
            a.e(f"v_cvt_pk_bf16_f32 v{Q+10*X+i}, v{acc+18*X+2*i}, v{acc+18*X+2*i+1}")
    a.e(f"v_and_b32 v{t0}, 31, v{lane}\nv_lshrrev_b32 v{t1}, 5, v{lane}\nv_mul_u32_u24 v{t1}, 18432, v{t1}")
    a.e(f"v_lshl_add_u32 v{t2}, v{t0}, 4, v{t1}\nv_lshl_add_u32 v{t3}, v{t0}, 2, v{t1}")
    a.e(f"s_lshl_b32 s53, s{S_RB}, 4\ns_lshl_b32 s54, s{S_CB}, 2\ns_add_u32 s53, s53, s54\ns_lshl_b32 s53, s53, 2\ns_add_u32 s53, s53, s{S_WAVE}\ns_mul_i32 s53, s53, 2304")
    a.e(f"s_add_u32 s53, s53, {WS_Q}\ns_add_u32 s54, s53, 9216")
    for X in range(4):
        so = 53 + (X >> 1)
        for p in range(2):
            a.e(f"buffer_store_dwordx4 {vr(Q+10*X+4*p,4)}, v{t2}, s[{R_WS}:{R_WS+3}], s{so} offen offset:{(X&1)*512 + p*1024}")
        a.e(f"buffer_store_dword v{Q+10*X+8}, v{t3}, s[{R_WS}:{R_WS+3}], s{so} offen offset:{2048 + (X&1)*128}")
    k.stamp(6)
    a.e(f"s_branch L_fin_{k.name}")
    V = Alloc(1, 256)
    for r in [lane, t0, t1, t2, t3] + vx + vw + [swz]: V.free[r] = False
    a.label("L_b1"); a.hist = []
    a.e(f"v_mul_u32_u24 v{t0}, 73728, v{t3}\nv_add_u32 v{vx[0]}, v{t0}, v{swz}\nv_xor_b32 v{vx[1]}, 64, v{vx[0]}")
    a.e(f"s_lshl_b32 s67, s{S_RB}, 2\ns_add_u32 s67, s67, s{S_WAVE}\ns_mul_i32 s{S_XB}, s67, 1152")
    a.e(f"s_mov_b32 s{S_WSTEP}, 128")
    a.e(f"s_lshl_b32 s{S_CB}, s51, 1\ns_and_b32 s53, s52, 1\ns_add_u32 s{S_CB}, s{S_CB}, s53")
    a.e(f"s_and_b32 s53, s{S_WAVE}, 1\ns_mul_i32 s54, s53, 40\ns_mul_i32 s{S_WB}, s{S_CB}, 80\ns_add_u32 s{S_WB}, s{S_WB}, s54\ns_mul_i32 s{S_WB}, s{S_WB}, 1152")
    a.e(f"s_lshl_b32 s53, s53, 6")
    a.e(f"v_mul_u32_u24 v{t0}, 1152, v{t3}\nv_add_u32 v{t0}, v{t0}, v{swz}\nv_xor_b32 v{vw[0]}, s53, v{t0}")
    for j in range(1, 5):
        a.e(f"v_xor_b32 v{vw[j]}, 64, v{vw[j-1]}\nv_add_u32 v{vw[j]}, 9216, v{vw[j]}")
    a.e("s_waitcnt lgkmcnt(0)")
    srd(a, R_X, S_BX, 2048*1152); srd(a, R_WS, S_WS, WS_SIZE)
    a.e(f"s_cmp_ge_u32 s{S_WAVE}, 2\ns_cselect_b32 s54, s{S_HIM}, s{S_HRE}\ns_cselect_b32 s55, s{S_HIM+1}, s{S_HRE+1}")
    srd(a, R_W, 54, 289*1152)
    k.stamp(1)
    for c in range(NS - 1):
        for g in dma_chunk(c, vx, vw, 8*73728): a.e(g)
    la = [V.get(), V.get()]; xs = [V.get(), V.get()]; wsr = [V.get(), V.get()]
    a.e(f"v_and_b32 v{t0}, 15, v{lane}\nv_lshrrev_b32 v{t1}, 4, v{lane}\nv_bfe_u32 v{t2}, v{lane}, 1, 3\nv_xor_b32 v{t1}, v{t1}, v{t2}")
    a.e(f"v_lshlrev_b32 v{t0}, 7, v{t0}\nv_lshl_add_u32 v{la[0]}, v{t1}, 4, v{t0}\nv_xor_b32 v{la[1]}, 64, v{la[0]}")
    TC = [V.get(4), V.get(4)]; TS = [V.get(4), V.get(4)]; TN = [V.get(4), V.get(4)]
    e0, e1, e2, e3 = V.get(), V.get(), V.get(), V.get()
    a.e(f"v_and_b32 v{t0}, 15, v{lane}\nv_lshrrev_b32 v{t1}, 4, v{lane}\nv_lshlrev_b32 v{t1}, 8, v{t1}\nv_add_u32 v{t1}, s67, v{t1}")
    for kt in range(2):
        if kt: a.e(f"v_add_u32 v{t0}, 16, v{t0}")
        for jp in range(4):
            for h, (ec, es) in enumerate(((e0, e1), (e2, e3))):
                j = 2*jp + h
                s1off = 64*(16*(j//4) + j % 4)
                a.e(f"v_add_u32 v{t2}, {s1off}, v{t1}\nv_mul_u32_u24 v{t2}, v{t2}, v{t0}\nv_and_b32 v{t2}, 2047, v{t2}\nv_cvt_f32_u32 v{t2}, v{t2}\nv_mul_f32 v{t2}, 0x3a000000, v{t2}")
                a.e(f"v_cos_f32 v{ec}, v{t2}\nv_sin_f32 v{es}, v{t2}")
            a.e(f"v_cvt_pk_bf16_f32 v{TC[kt]+jp}, v{e0}, v{e2}\nv_cvt_pk_bf16_f32 v{TS[kt]+jp}, v{e1}, v{e3}")
            a.e(f"v_xor_b32 v{TN[kt]+jp}, 0x80008000, v{TS[kt]+jp}")
    acc = V.get(80, 4)
    FX = [V.get(8, 4), V.get(8, 4)]; FW = [V.get(40, 4), V.get(40, 4)]
    def breads(s):
        c, ks = divmod(s, 2); b = s & 1
        r = []
        pre = ""
        if ks == 0:
            base = (c % NS) * SLOT
            pre = f"s_add_u32 s53, s65, {base}\n" + "\n".join(f"v_add_u32 v{xs[i]}, s53, v{la[i]}\nv_add_u32 v{wsr[i]}, {base+16384}, v{la[i]}" for i in range(2)) + "\n"
        for rt in range(2):
            r.append((pre if rt == 0 else "") + f"ds_read_b128 {vr(FX[b]+4*rt,4)}, v{xs[ks]} offset:{2048*rt}")
        for ct in range(10):
            r.append(f"ds_read_b128 {vr(FW[b]+4*ct,4)}, v{wsr[ks]} offset:{2048*ct}")
        return r
    q = []
    for c in range(NS - 1): q += [("c", c)] * 9
    wait_chunk(0); a.e("s_barrier")
    k.stamp(2)
    for r in breads(0): a.e(r)
    pend = []
    for s in range(18):
        c, ks = divmod(s, 2); b = s & 1
        fill = []
        if s + 1 < 18:
            if ks == 1:
                wait_chunk(c + 1); a.e("s_barrier")
                nc = c - 1 + NS
                if nc < 9 and not any(x == ("c", nc) for x in q):
                    pend = dma_chunk(nc, vx, vw, 8*73728); q += [("c", nc)] * 9
            fill = breads(s + 1)
        a.e("s_waitcnt lgkmcnt(0)")
        seq = []
        for i in range(20):
            ct, rt = divmod(i, 2)
            D = acc + 8*ct + 4*rt
            seq.append(f"v_mfma_f32_16x16x32_bf16 {vr(D,4)}, {vr(FX[b]+4*rt,4)}, {vr(FW[b]+4*ct,4)}, {'0' if s == 0 else vr(D,4)}")
            if i < 12 and fill: seq.append(fill.pop(0))
            elif i >= 12 and i % 2 == 0 and pend: seq.append(pend.pop(0))
        for x in seq: a.e(x)
        if ks == 0:
            while pend: a.e(pend.pop(0))
    k.stamp(3)
    for x in FX: V.put(x, 8)
    for x in FW: V.put(x, 40)
    BF = V.get(40, 4)
    for ct in range(10):
        for i in range(4):
            a.e(f"v_cvt_pk_bf16_f32 v{BF+4*ct+i}, v{acc+8*ct+2*i}, v{acc+8*ct+2*i+1}")
    for qq in range(5):
        for kt in range(2):
            Dr = acc + 16*qq + 8*kt; Di = Dr + 4
            X = BF + 4*qq; Y = BF + 4*(5+qq)
            a.e(f"v_mfma_f32_16x16x32_bf16 {vr(Dr,4)}, {vr(TC[kt],4)}, {vr(X,4)}, 0")
            a.e(f"v_mfma_f32_16x16x32_bf16 {vr(Di,4)}, {vr(TN[kt],4)}, {vr(X,4)}, 0")
            a.e(f"v_mfma_f32_16x16x32_bf16 {vr(Dr,4)}, {vr(TS[kt],4)}, {vr(Y,4)}, {vr(Dr,4)}")
            a.e(f"v_mfma_f32_16x16x32_bf16 {vr(Di,4)}, {vr(TC[kt],4)}, {vr(Y,4)}, {vr(Di,4)}")
    a.e(f"v_and_b32 v{t0}, 15, v{lane}\nv_lshrrev_b32 v{t1}, 4, v{lane}\nv_mul_u32_u24 v{t1}, 1280, v{t1}\nv_lshl_add_u32 v{t0}, v{t0}, 2, v{t1}")
    a.e(f"s_mul_i32 s53, s{S_WAVE}, 10240\nv_add_u32 v{t0}, s53, v{t0}")
    a.e("s_barrier")
    GP = V.get(40, 4)
    for qq in range(5):
        for kt in range(2):
            for i in range(4):
                Dr = acc + 16*qq + 8*kt
                r = GP + 8*qq + 4*kt + i
                a.e(f"v_cvt_pk_bf16_f32 v{r}, v{Dr+i}, v{Dr+4+i}")
                a.e(f"ds_write_b32 v{t0}, v{r} offset:{((16*kt+i)*80 + 16*qq)*4}")
    a.e(f"v_lshlrev_b32 v{t1}, 2, v0")
    a.e("s_waitcnt lgkmcnt(0)\ns_barrier")
    for i in range(10):
        a.e(f"ds_read2st64_b32 {vr(acc+4*i,2)}, v{t1} offset0:{4*i} offset1:{4*i+40}")
        a.e(f"ds_read2st64_b32 {vr(acc+4*i+2,2)}, v{t1} offset0:{4*i+80} offset1:{4*i+120}")
        if i == 6: a.e("s_waitcnt lgkmcnt(0)")
    a.e(f"s_mul_i32 s53, s{S_RB}, 320\ns_mul_i32 s54, s{S_CB}, 80\ns_add_u32 s53, s53, s54\ns_lshl_b32 s53, s53, 4\ns_add_u32 s53, s53, {WS_G}")
    go = [V.get() for _ in range(10)]
    for i in range(10):
        a.e(f"v_add_u32 v{t0}, {256*i}, v0")
        divc(a, t2, t0, 80, 2560)
        a.e(f"v_mul_u32_u24 v{t2}, {5120-80}, v{t2}\nv_add_lshl_u32 v{go[i]}, v{t2}, v{t0}, 4")
    a.e("s_waitcnt lgkmcnt(0)")
    for i in range(10):
        a.e(f"buffer_store_dwordx4 {vr(acc+4*i,4)}, v{go[i]}, s[{R_WS}:{R_WS+3}], s53 offen")
    k.stamp(6)
    k.end(0, 256, 256)
    return 163840


def k2(a):
    k = K(a, "p2_kernel", 256)
    V = Alloc(1, 256)
    lane = V.get(); t0 = V.get(); t1 = V.get(); t2 = V.get(); t3 = V.get()
    L_WP, L_KV, L_G = 0, 2048, 8192
    S_HP, S_K1, S_C2 = 63, 64, 65
    a.e(f"v_and_b32 v{lane}, 63, v0\nv_lshrrev_b32 v{t0}, 6, v0\nv_readfirstlane_b32 s{S_WAVE}, v{t0}")
    a.e(f"s_and_b32 s48, s2, 7\ns_lshl_b32 s{S_HP}, s48, 1\ns_bfe_u32 s49, s2, 0x10003\ns_add_u32 s{S_HP}, s{S_HP}, s49\ns_lshr_b32 s{S_RB}, s2, 4")
    a.e(f"s_lshl_b32 s{S_K1}, s48, 2\ns_bfe_u32 s49, s2, 0x20003\ns_add_u32 s{S_K1}, s{S_K1}, s49\ns_lshr_b32 s{S_C2}, s2, 5")
    a.e(f"s_mov_b32 s{S_L}, {LOG2E}\ns_mov_b32 s{S_L+1}, {LOG2E}")
    a.e("s_waitcnt lgkmcnt(0)")
    srd(a, R_WS, S_WS, WS_SIZE); srd(a, R_P, S_WPHI, 32*648); srd(a, R_OUT, S_OUT, 2048*2304)
    a.e(f"s_lshl_b32 s67, s{S_HP}, 1")
    nwp = wphi_dma(a, V, lane, 2, 67, L_WP)
    Q = V.get(12, 4)
    a.e(f"s_lshl_b32 s53, s{S_RB}, 4\ns_add_u32 s53, s53, s{S_HP}\ns_lshl_b32 s53, s53, 2\ns_add_u32 s53, s53, s{S_WAVE}\ns_mul_i32 s53, s53, 2304\ns_add_u32 s53, s53, {WS_Q}")
    a.e(f"v_lshlrev_b32 v{t0}, 4, v{lane}\nv_lshlrev_b32 v{t1}, 2, v{lane}")
    a.e(f"buffer_load_dwordx4 {vr(Q,4)}, v{t0}, s[{R_WS}:{R_WS+3}], s53 offen")
    a.e(f"buffer_load_dwordx4 {vr(Q+4,4)}, v{t0}, s[{R_WS}:{R_WS+3}], s53 offen offset:1024")
    a.e(f"buffer_load_dword v{Q+8}, v{t1}, s[{R_WS}:{R_WS+3}], s53 offen offset:2048")
    for i in (9, 10, 11): a.e(f"v_mov_b32 v{Q+i}, 0")
    PL = V.get(128, 4)
    u0, u1 = V.get(), V.get()
    a.e(f"v_lshlrev_b32 v{u0}, 4, v0\nv_add_u32 v{t0}, 4096, v{u0}\nv_mov_b32 v{t3}, {OOB}\nv_cmp_gt_u32 vcc, 104, v0\nv_cndmask_b32 v{u1}, v{t3}, v{t0}, vcc")
    a.e(f"s_mul_i32 s53, s{S_HP}, {16*5760}\ns_add_u32 s53, s53, {WS_PART}")
    for r in range(16):
        a.e(f"buffer_load_dwordx4 {vr(PL+4*r,4)}, v{u0}, s[{R_WS}:{R_WS+3}], s53 offen")
        a.e(f"buffer_load_dwordx4 {vr(PL+64+4*r,4)}, v{u1}, s[{R_WS}:{R_WS+3}], s53 offen")
        if r < 15: a.e("s_add_u32 s53, s53, 5760")
    ga, gb = V.get(), V.get()
    a.e(f"v_bfe_u32 v{t0}, v{lane}, 2, 2\nv_and_b32 v{t1}, 3, v{lane}\nv_lshl_add_u32 v{ga}, v{t0}, 3, v{t1}\nv_and_b32 v{gb}, 15, v{lane}\nv_add_u32 v{gb}, 64, v{gb}")
    a.e(f"s_mul_i32 s53, s{S_C2}, 72\ns_cmp_ge_u32 s{S_C2}, 4\ns_cselect_b32 s54, -16, 16\ns_cselect_b32 s55, 576, 0")
    a.e(f"s_mul_i32 s53, s53, s54\ns_lshl_b32 s55, s55, 4\ns_add_u32 s53, s53, s55")
    a.e(f"v_lshrrev_b32 v{t0}, 4, v{lane}\nv_mul_u32_u24 v{t0}, 5120, v{t0}\nv_add_u32 v{t0}, s53, v{t0}")
    a.e(f"v_mul_lo_u32 v{ga}, v{ga}, s54\nv_mul_lo_u32 v{gb}, v{gb}, s54\nv_add_u32 v{ga}, v{ga}, v{t0}\nv_add_u32 v{gb}, v{gb}, v{t0}")
    a.e(f"v_and_b32 v{t1}, 8, v{lane}\nv_cmp_eq_u32 vcc, 0, v{t1}\nv_cndmask_b32 v{gb}, v{t3}, v{gb}, vcc")
    a.e(f"s_lshl_b32 s55, s{S_K1}, 2\ns_add_u32 s55, s55, s{S_WAVE}\ns_mul_i32 s55, s55, {4*5120}\ns_add_u32 s55, s55, {WS_G}")
    a.e(f"s_lshl_b32 s56, s{S_WAVE}, 10")
    for mt in range(5):
        if mt < 4:
            a.e(f"s_mul_i32 s57, s54, {32*(mt>>1) + 4*(mt&1)}\nv_add_u32 v{t1}, s57, v{ga}")
        a.e(f"s_add_u32 m0, s56, {L_G + mt*4096}")
        a.e(f"buffer_load_dwordx4 v{t1 if mt < 4 else gb}, s[{R_WS}:{R_WS+3}], s55 offen lds")
    V.put(ga); V.put(gb)
    k.stamp(1)
    a.e(f"v_mov_b32 v{t0}, 0\nv_mov_b32 v{t1}, 0\nv_lshlrev_b32 v{t2}, 3, v0")
    a.e(f"ds_write_b64 v{t2}, {vr(t0,2)} offset:{L_KV}\nds_write_b64 v{t2}, {vr(t0,2)} offset:{L_KV+2048}")
    a.e(f"s_waitcnt vmcnt({3+32+5}) lgkmcnt(0)\ns_barrier")
    F = wphi_frags(a, V, lane, 1, 1, L_WP)
    a.e(f"s_waitcnt vmcnt({32+5})")
    T = V.get(16, 4); Tx = V.get(16, 4)
    for (D, tt) in ((T, 0), (Tx, 1)):
        for w in range(3):
            a.e(f"v_mfma_f32_32x32x16_bf16 {vr(D,16)}, {vr(F[0][tt][w],4)}, {vr(Q+4*w,4)}, {'0' if w == 0 else vr(D,16)}")
    for tt in range(2):
        for w in range(3): V.put(F[0][tt][w], 4)
    V.put(Q, 12)
    R = V.get(22, 2)
    softmax2(a, V, T, Tx, R, R + 10)
    for r in (9, 19, 20, 21): a.e(f"v_mov_b32 v{R+r}, 0")
    for j in range(9): a.e(f"v_permlane32_swap_b32 v{R+j}, v{R+10+j}")
    k.stamp(2)
    for r in range(1, 16):
        a.e(f"s_waitcnt vmcnt({5 + 2*(15-r)})")
        for h in range(2):
            for p in range(2):
                a.e(f"v_pk_add_f32 {vr(PL+64*h+2*p,2)}, {vr(PL+64*h+2*p,2)}, {vr(PL+64*h+4*r+2*p,2)}")
    k.stamp(3)
    for h in range(2):
        a.e(f"v_add_u32 v{t0}, {256*h}, v0")
        divc(a, t1, t0, 20, 512)
        a.e(f"v_mul_u32_u24 v{t2}, 20, v{t1}\nv_sub_u32 v{t0}, v{t0}, v{t2}\nv_mul_u32_u24 v{t0}, 96, v{t0}")
        a.e(f"v_cmp_le_u32 vcc, 9, v{t1}\nv_subrev_u32 v{t2}, 9, v{t1}\nv_cndmask_b32 v{t1}, v{t1}, v{t2}, vcc\nv_add_u32 v{t2}, 1920, v{t0}\nv_cndmask_b32 v{t0}, v{t0}, v{t2}, vcc")
        a.e(f"v_lshl_add_u32 v{t0}, v{t1}, 3, v{t0}\nv_add_u32 v{t2}, 12, v{t0}")
        a.e(f"v_cmp_le_u32 vcc, 5, v{t1}\nv_cndmask_b32 v{t3}, v{t0}, v{t2}, vcc\nv_cmp_le_u32 vcc, 4, v{t1}\nv_cndmask_b32 v{t0}, v{t0}, v{t2}, vcc")
        a.e(f"v_cvt_pk_bf16_f32 v{PL+64*h}, v{PL+64*h}, v{PL+64*h+1}\nv_cvt_pk_bf16_f32 v{PL+64*h+1}, v{PL+64*h+2}, v{PL+64*h+3}")
        if h: a.e(f"v_cmp_gt_u32 vcc, 104, v0\ns_and_saveexec_b64 s[54:55], vcc")
        a.e(f"ds_write_b32 v{t3}, v{PL+64*h} offset:{L_KV}\nds_write_b32 v{t0}, v{PL+64*h+1} offset:{L_KV+4}")
        if h: a.e("s_mov_b64 exec, s[54:55]")
    V.put(PL, 128)
    DF = V.get(16, 4)
    e0, e1 = V.get(), V.get()
    a.e(f"v_and_b32 v{t0}, 15, v{lane}\ns_lshl_b32 s53, s{S_WAVE}, 4\nv_add_u32 v{t0}, s53, v{t0}\nv_lshrrev_b32 v{t1}, 4, v{lane}\nv_lshlrev_b32 v{t1}, 2, v{t1}")
    for ks in range(4):
        for jj in range(4):
            a.e(f"v_add_u32 v{t2}, {16*ks+jj}, v{t1}\nv_mul_u32_u24 v{t2}, v{t2}, v{t0}\nv_and_b32 v{t2}, 63, v{t2}\nv_cvt_f32_u32 v{t2}, v{t2}\nv_mul_f32 v{t2}, 0x3c800000, v{t2}")
            a.e(f"v_cos_f32 v{e0}, v{t2}\nv_sin_f32 v{e1}, v{t2}\nv_cvt_pk_bf16_f32 v{DF+4*ks+jj}, v{e0}, v{e1}")
    V.put(e0); V.put(e1)
    a.e(f"v_bfe_u32 v{t0}, v{lane}, 3, 2\nv_and_b32 v{t1}, 3, v{lane}\nv_lshl_add_u32 v{t0}, v{t0}, 2, v{t1}\nv_bfe_u32 v{t1}, v{lane}, 2, 1")
    a.e(f"v_lshl_add_u32 v{t2}, v{t1}, 3, v{t0}\nv_lshl_add_u32 v{t1}, v{t1}, 1, 8\nv_cmp_lt_u32 vcc, v{t0}, v{t1}\nv_cndmask_b32 v{t2}, 19, v{t2}, vcc")
    a.e(f"v_cmp_ne_u32 vcc, 10, v{t0}\nv_cndmask_b32 v{t2}, 18, v{t2}, vcc\nv_mul_u32_u24 v{t2}, 96, v{t2}\nv_lshrrev_b32 v{t0}, 5, v{lane}\nv_mad_u32_u24 v{t2}, v{t0}, 48, v{t2}")
    a.e("s_waitcnt vmcnt(0) lgkmcnt(0)\ns_barrier")
    KF = V.get(24, 4)
    for X in range(2):
        for w in range(3):
            a.e(f"ds_read_b128 {vr(KF+12*X+4*w,4)}, v{t2} offset:{L_KV + 1920*X + 16*w}")
    GF = V.get(80, 4)
    a.e(f"v_lshlrev_b32 v{t3}, 4, v{lane}")
    for i in range(8): a.e(f"ds_read_b128 {vr(GF+4*i,4)}, v{t3} offset:{L_G + 1024*i}")
    a.e("s_waitcnt lgkmcnt(8)")
    for X, D in enumerate((T, Tx)):
        for w in range(3):
            a.e(f"v_mfma_f32_32x32x16_bf16 {vr(D,16)}, {vr(KF+12*X+4*w,4)}, {vr(R+10*X+4*w,4)}, {'0' if w == 0 else vr(D,16)}")
    a.e("s_waitcnt lgkmcnt(0)")
    for i in range(8, 20): a.e(f"ds_read_b128 {vr(GF+4*i,4)}, v{t3} offset:{L_G + 1024*i}")
    a.e(f"v_bfe_u32 v{t0}, v{lane}, 4, 1\nv_lshlrev_b32 v{t1}, 14, v{t0}\nv_lshlrev_b32 v{t0}, 11, v{t0}\nv_and_b32 v{t2}, 15, v{lane}\nv_lshl_add_u32 v{t1}, v{t2}, 4, v{t1}\nv_lshl_add_u32 v{t0}, v{t2}, 3, v{t0}")
    a.e(f"v_lshrrev_b32 v{t2}, 5, v{lane}\nv_lshl_add_u32 v{t1}, v{t2}, 8, v{t1}\nv_cmp_eq_u32 vcc, 1, v{t2}\nv_mov_b32 v{t2}, {OOB}\nv_cndmask_b32 v{t0}, v{t2}, v{t0}, vcc")
    a.e(f"s_lshl_b32 s53, s{S_RB}, 2\ns_add_u32 s53, s53, s{S_WAVE}\ns_lshl_b32 s53, s53, 5\ns_add_u32 s53, s53, s{S_HP}")
    a.e(f"s_lshl_b32 s54, s53, 7\ns_add_u32 s54, s54, {WS_OL}\ns_lshl_b32 s53, s53, 10\ns_add_u32 s53, s53, {WS_O}")
    OP = V.get(12, 4)
    for X, D in enumerate((T, Tx)):
        a.e(f"v_add_f32 v{D+10}, 0x358637bd, v{D+10}\nv_rcp_f32 v{D+10}, v{D+10}")
    for X, D in enumerate((T, Tx)):
        for i in range(5):
            a.e(f"v_pk_mul_f32 {vr(D+2*i,2)}, {vr(D+2*i,2)}, {vr(D+10,2)} op_sel_hi:[1,0]")
        for i in range(4):
            a.e(f"v_cvt_pk_bf16_f32 v{OP+4*X+i}, v{D+2*i}, v{D+2*i+1}")
        a.e(f"v_cvt_pk_bf16_f32 v{OP+8+X}, v{D+8}, v{D+9}")
        a.e(f"buffer_store_dwordx4 {vr(OP+4*X,4)}, v{t1}, s[{R_WS}:{R_WS+3}], s53 offen offset:{512*X}")
    a.e(f"buffer_store_dwordx2 {vr(OP+8,2)}, v{t0}, s[{R_WS}:{R_WS+3}], s54 offen")
    k.stamp(4)
    Y = V.get(20, 4)
    a.e("s_waitcnt lgkmcnt(0)")
    for ks in range(4):
        for mt in range(5):
            a.e(f"v_mfma_f32_16x16x32_bf16 {vr(Y+4*mt,4)}, {vr(GF+4*(4*mt+ks),4)}, {vr(DF+4*ks,4)}, {'0' if ks == 0 else vr(Y+4*mt,4)}")
    a.e(f"v_and_b32 v{t0}, 15, v{lane}\ns_lshl_b32 s53, s{S_WAVE}, 9\ns_add_u32 s53, s53, s{S_K1}\nv_lshl_add_u32 v{t0}, v{t0}, 5, s53")
    a.e(f"s_cmp_ge_u32 s{S_C2}, 4\ns_cselect_b32 s54, -1, 1\nv_mul_lo_u32 v{t0}, v{t0}, s54\nv_and_b32 v{t0}, 2047, v{t0}\nv_mul_u32_u24 v{t0}, 2304, v{t0}")
    a.e(f"v_lshrrev_b32 v{t2}, 4, v{lane}\nv_lshl_add_u32 v{t1}, v{t2}, 3, v{t0}\nv_lshl_add_u32 v{t0}, v{t2}, 4, v{t0}")
    a.e(f"v_cmp_gt_u32 vcc, 2, v{t2}\nv_mov_b32 v{t2}, {OOB}\nv_cndmask_b32 v{t1}, v{t2}, v{t1}, vcc")
    a.e(f"s_mul_i32 s53, s{S_C2}, 144\ns_add_u32 s53, s53, 1152")
    YP = V.get(12, 4)
    for i in range(10): a.e(f"v_cvt_pk_bf16_f32 v{YP+i}, v{Y+2*i}, v{Y+2*i+1}")
    a.e(f"buffer_store_dwordx4 {vr(YP,4)}, v{t0}, s[{R_OUT}:{R_OUT+3}], s53 offen")
    a.e(f"buffer_store_dwordx4 {vr(YP+4,4)}, v{t0}, s[{R_OUT}:{R_OUT+3}], s53 offen offset:64")
    a.e(f"buffer_store_dwordx2 {vr(YP+8,2)}, v{t1}, s[{R_OUT}:{R_OUT+3}], s53 offen offset:128")
    k.stamp(5)
    k.end(1, 256, 256)
    return 32768

def k3(a):
    k = K(a, "p3_kernel", 256)
    V = Alloc(1, 256)
    lane = V.get(); t0 = V.get(); t1 = V.get(); t2 = V.get(); t3 = V.get()
    S_RQ, S_C3 = 62, 63
    a.e(f"v_and_b32 v{lane}, 63, v0\nv_lshrrev_b32 v{t0}, 6, v0\nv_readfirstlane_b32 s{S_WAVE}, v{t0}")
    a.e(f"s_and_b32 s48, s2, 7\ns_lshl_b32 s{S_RQ}, s48, 2\ns_bfe_u32 s49, s2, 0x20003\ns_add_u32 s{S_RQ}, s{S_RQ}, s49\ns_lshr_b32 s{S_C3}, s2, 5")
    vw = [V.get() for _ in range(5)]
    for j in range(5):
        a.e(f"v_add_u32 v{t0}, {64*j}, v{lane}")
        divc(a, t1, t0, 10, 320)
        a.e(f"v_mul_u32_u24 v{t2}, 10, v{t1}\nv_sub_u32 v{t0}, v{t0}, v{t2}\nv_mul_u32_u24 v{t1}, 1152, v{t1}\nv_cmp_gt_u32 vcc, 9, v{t0}\nv_lshl_add_u32 v{t1}, v{t0}, 4, v{t1}")
        a.e(f"v_mov_b32 v{t3}, {OOB}\nv_cndmask_b32 v{vw[j]}, v{t3}, v{t1}, vcc")
    a.e("s_waitcnt lgkmcnt(0)")
    srd(a, R_WS, S_WS, WS_SIZE); srd(a, R_W, S_WO, 576*1152); srd(a, R_OUT, S_OUT, 2048*2304)
    a.e(f"s_mul_i32 s53, s{S_C3}, 144\ns_mul_i32 s54, s{S_WAVE}, {32*1152}\ns_add_u32 s53, s53, s54\ns_mul_i32 s54, s{S_WAVE}, 5120")
    k.stamp(1)
    for gi in range(5):
        for j in range(5):
            a.e(f"s_add_u32 m0, s54, {gi*20480 + j*1024}")
            a.e(f"buffer_load_dwordx4 v{vw[j]}, s[{R_W}:{R_W+3}], s53 offen lds")
        a.e(f"s_add_u32 s53, s53, {128*1152}")
    OF = V.get(72, 4)
    a.e(f"s_lshl_b32 s53, s{S_RQ}, 2\ns_add_u32 s53, s53, s{S_WAVE}\ns_lshl_b32 s54, s53, 11\ns_add_u32 s54, s54, {WS_OL}\ns_lshl_b32 s53, s53, 14\ns_add_u32 s53, s53, {WS_O}")
    a.e(f"v_lshlrev_b32 v{t0}, 4, v{lane}\nv_and_b32 v{t1}, 15, v{lane}\nv_lshrrev_b32 v{t2}, 4, v{lane}\nv_lshlrev_b32 v{t2}, 8, v{t2}\nv_lshl_add_u32 v{t1}, v{t1}, 3, v{t2}")
    for s in range(16):
        a.e(f"buffer_load_dwordx4 {vr(OF+4*s,4)}, v{t0}, s[{R_WS}:{R_WS+3}], s53 offen offset:{(s&3)*1024}")
        if s & 3 == 3: a.e("s_add_u32 s53, s53, 4096")
    for u in range(2):
        for h in range(2):
            a.e(f"buffer_load_dwordx2 {vr(OF+64+4*u+2*h,2)}, v{t1}, s[{R_WS}:{R_WS+3}], s54 offen offset:{1024*u + 128*h}")
    am, a4, lm, l4 = V.get(), V.get(), V.get(), V.get()
    a.e(f"v_lshrrev_b32 v{t0}, 5, v{lane}\nv_mul_u32_u24 v{t0}, 18, v{t0}\nv_bfe_u32 v{t1}, v{lane}, 4, 1\nv_lshl_add_u32 v{t0}, v{t1}, 3, v{t0}\nv_bfe_u32 v{t1}, v{lane}, 2, 2\nv_add_u32 v{t0}, v{t0}, v{t1}\nv_mul_u32_u24 v{t0}, 160, v{t0}")
    a.e(f"v_and_b32 v{t2}, 3, v{lane}\nv_lshl_add_u32 v{am}, v{t2}, 4, v{t0}\nv_lshl_add_u32 v{a4}, v{t2}, 3, v{t0}")
    a.e(f"v_lshrrev_b32 v{t0}, 4, v{lane}\nv_mul_u32_u24 v{t0}, 72, v{t0}\nv_bfe_u32 v{t1}, v{lane}, 3, 1\nv_mad_u32_u24 v{t0}, v{t1}, 18, v{t0}\nv_bfe_u32 v{t1}, v{lane}, 2, 1\nv_add3_u32 v{t0}, v{t0}, v{t1}, 16\nv_mul_u32_u24 v{t0}, 160, v{t0}")
    a.e(f"v_lshl_add_u32 v{lm}, v{t2}, 4, v{t0}\nv_lshl_add_u32 v{l4}, v{t2}, 3, v{t0}")
    am2, a42 = V.get(), V.get()
    a.e(f"v_add_u32 v{am2}, {8*5760}, v{am}\nv_add_u32 v{a42}, {8*5760}, v{a4}")
    a.e("s_waitcnt vmcnt(20)\ns_barrier")
    k.stamp(2)
    FW = [V.get(20, 4), V.get(20, 4)]
    Y = V.get(20, 4)
    def rd(s):
        r = []
        for mt in range(5):
            for uu in range(2):
                co = (64*(mt>>1) + 8*(mt&1)) if mt < 4 else 128
                if s < 16:
                    ad = (am if s < 8 else am2) if mt < 4 else (a4 if s < 8 else a42)
                    off = (s & 7)*5760 + uu*640 + co
                else:
                    ad = lm if mt < 4 else l4
                    off = (8*(s-16) + uu)*5760 + co
                r.append(f"ds_read_b64_tr_b16 {vr(FW[s&1]+4*mt+2*uu,2)}, v{ad} offset:{off}")
        return r
    for x in rd(0): a.e(x)
    for s in range(18):
        fill = rd(s+1) if s < 17 else []
        left = (19 - s) if s < 16 else (2 if s == 16 else 0)
        a.e(f"s_waitcnt vmcnt({left}) lgkmcnt(0)")
        for mt in range(5):
            a.e(f"v_mfma_f32_16x16x32_bf16 {vr(Y+4*mt,4)}, {vr(FW[s&1]+4*mt,4)}, {vr(OF+4*s,4)}, {'0' if s == 0 else vr(Y+4*mt,4)}")
            for x in fill[3*mt:3*mt+3]: a.e(x)
    k.stamp(3)
    a.e(f"v_and_b32 v{t0}, 15, v{lane}\nv_mul_u32_u24 v{t0}, 2304, v{t0}")
    a.e(f"v_lshrrev_b32 v{t2}, 4, v{lane}\nv_lshl_add_u32 v{t1}, v{t2}, 3, v{t0}\nv_lshl_add_u32 v{t0}, v{t2}, 4, v{t0}")
    a.e(f"v_cmp_gt_u32 vcc, 2, v{t2}\nv_mov_b32 v{t2}, {OOB}\nv_cndmask_b32 v{t1}, v{t2}, v{t1}, vcc")
    a.e(f"s_lshl_b32 s53, s{S_RQ}, 2\ns_add_u32 s53, s53, s{S_WAVE}\ns_mul_i32 s53, s53, {16*2304}\ns_mul_i32 s54, s{S_C3}, 144\ns_add_u32 s53, s53, s54")
    YP = V.get(12, 4)
    for i in range(10): a.e(f"v_cvt_pk_bf16_f32 v{YP+i}, v{Y+2*i}, v{Y+2*i+1}")
    a.e(f"buffer_store_dwordx4 {vr(YP,4)}, v{t0}, s[{R_OUT}:{R_OUT+3}], s53 offen")
    a.e(f"buffer_store_dwordx4 {vr(YP+4,4)}, v{t0}, s[{R_OUT}:{R_OUT+3}], s53 offen offset:64")
    a.e(f"buffer_store_dwordx2 {vr(YP+8,2)}, v{t1}, s[{R_OUT}:{R_OUT+3}], s53 offen offset:128")
    k.stamp(4)
    k.end(2, 256, 256)
    return 102400

def header(launches):
    s = open(f"cdna_kernels/{NAME}.s.ref").read().split("; Override launch")[0]
    for (k, g, b, lds) in launches:
        s += f"; @launch kernel={k} grid=({g},1,1) block=({b},1,1) lds={lds}\n"
    s += '.amdgcn_target "amdgcn-amd-amdhsa--gfx950"\n.text\n'
    return s

if __name__ == "__main__":
    STAMPS = "--stamps" in sys.argv
    a = Asm()
    l1 = k1(a, (2, 2))
    l2 = k2(a)
    l3 = k3(a)
    out = sys.argv[1]
    open(out, "w").write(header([("p1_kernel", 256, 256, l1), ("p2_kernel", 256, 256, l2), ("p3_kernel", 256, 256, l3)]) + a.text())
    print("instrs", a.count, "nops", a.nops)
```

```python
import sys, math
from asmb import *

NAME = "concat_heads__linear_kernel_hedgehog__spectral_fnet__prompt"
WS_Q = 0
WS_PART = 4 << 20
WS_O = 8 << 20
WS_OL = WS_O + (2 << 20)
WS_G = 12 << 20
WS_SIZE = 16 << 20
WS_STAMP = 32 << 20
OOB = 0x40000000
LOG2E = 0x3fb8aa3b
STAMPS = False

S_AX, S_W, S_WPHI, S_WO, S_BX, S_WS, S_HRE, S_HIM, S_OUT, S_DBG = 4, 6, 8, 10, 12, 14, 16, 18, 20, 22
R_X, R_W, R_WS, R_P, R_OUT = 24, 28, 32, 36, 40
S_WAVE = 44
S_L = 46
S_T = 48
S_ST = 76

class K:
    def __init__(self, a, name, nwg):
        self.a = a; self.name = name; self.nst = 0
        a.raw(f".globl {name}\n.p2align 8\n.type {name},@function\n{name}:")
        a.hist = []
        a.e(f"s_cmp_ge_u32 s2, {nwg}")
        a.e(f"s_cbranch_scc1 L_end_{name}")
        self.stamp()
        if STAMPS: a.e("s_memrealtime s[74:75]")
        a.e("s_load_dwordx8 s[4:11], s[0:1], 0")
        a.e("s_load_dwordx2 s[12:13], s[0:1], 32")
        a.e("s_load_dwordx4 s[16:19], s[0:1], 56")
        a.e("s_load_dwordx4 s[20:23], s[0:1], 72")
        a.e("s_load_dwordx2 s[14:15], s[0:1], 88")
    def stamp(self, i=None):
        if not STAMPS: return
        if i is None: i = self.nst
        self.nst = max(self.nst, i + 1)
        assert i < 12
        self.a.e(f"s_memtime s[{S_ST+2*i}:{S_ST+2*i+1}]")
    def end(self, slot, vgpr, acc):
        a = self.a
        a.label(f"L_fin_{self.name}")
        if STAMPS:
            a.e("s_waitcnt vmcnt(0) lgkmcnt(0)")
            a.e(f"s_memtime s[{S_ST+22}:{S_ST+23}]")
            a.e(f"s_memrealtime s[{S_ST+24}:{S_ST+25}]")
            a.e("s_waitcnt lgkmcnt(0)")
            a.e("s_mov_b64 exec, 1")
            a.e(f"s_lshl_b32 s48, s2, 2\ns_add_u32 s48, s48, s{S_WAVE}\ns_lshl_b32 s48, s48, 6\ns_add_u32 s48, s48, {WS_STAMP + slot*(1<<20)}")
            a.e("v_mov_b32 v1, s48")
            for i in range(13):
                if i < 12 and i > 0: a.e(f"s_sub_u32 s{S_ST+2*i}, s{S_ST+2*i}, s{S_ST}")
                a.e(f"v_mov_b32 v2, s{S_ST+2*i}")
                a.e(f"global_store_dword v1, v2, s[{S_WS}:{S_WS+1}] offset:{4*i}")
            a.e(f"v_mov_b32 v2, s74\nglobal_store_dword v1, v2, s[{S_WS}:{S_WS+1}] offset:52")
            a.e("s_waitcnt vmcnt(0)")
        a.label(f"L_end_{self.name}")
        a.e("s_endpgm")
        a.raw(f""".section .rodata,"a"
.p2align 6
.amdhsa_kernel {self.name}
  .amdhsa_next_free_vgpr {vgpr}
  .amdhsa_next_free_sgpr 102
  .amdhsa_accum_offset {acc}
  .amdhsa_group_segment_fixed_size 0
  .amdhsa_kernarg_size 96
  .amdhsa_user_sgpr_count 2
  .amdhsa_user_sgpr_kernarg_segment_ptr 1
  .amdhsa_system_sgpr_workgroup_id_x 1
.end_amdhsa_kernel
.text""")

def srd(a, d, base, nbytes):
    a.e(f"s_mov_b32 s{d}, s{base}\ns_and_b32 s{d+1}, s{base+1}, 0xffff\ns_mov_b32 s{d+2}, {nbytes}\ns_mov_b32 s{d+3}, 0x20000")

def divc(a, dst, src, c, maxv):
    for sh in range(8, 24):
        m = (1 << sh) // c + 1
        if m < (1 << 24) and m * maxv < (1 << 32) and all((x * m) >> sh == x // c for x in range(maxv + 1)):
            a.e(f"v_mul_u32_u24 v{dst}, {m}, v{src}\nv_lshrrev_b32 v{dst}, {sh}, v{dst}")
            return
    raise RuntimeError("no magic")

def interleave(a, main, fill, start=0, per=None):
    fill = list(fill)
    n = len(main)
    if per is None: per = max(1, -(-len(fill) // max(1, n - start)))
    for i, m in enumerate(main):
        a.e(m)
        if i >= start:
            for _ in range(per):
                if fill: a.e(fill.pop(0))
    for f in fill: a.e(f)

def wphi_dma(a, V, lane, nheads, s_head0, lds_base):
    tot = nheads * 240
    n = -(-tot // 256)
    t0, t1, t2, t3 = V.get(), V.get(), V.get(), V.get()
    a.e(f"s_mul_i32 s{S_T}, s{s_head0}, 648")
    for i in range(n):
        a.e(f"s_lshl_b32 s{S_T+1}, s{S_WAVE}, 6\ns_add_u32 s{S_T+1}, s{S_T+1}, {i*256}")
        a.e(f"v_add_u32 v{t0}, s{S_T+1}, v{lane}")
        divc(a, t1, t0, 10, 1024)
        a.e(f"v_mul_u32_u24 v{t2}, 10, v{t1}\nv_sub_u32 v{t0}, v{t0}, v{t2}")
        divc(a, t2, t1, 24, 103)
        a.e(f"v_mul_u32_u24 v{t3}, 24, v{t2}\nv_sub_u32 v{t1}, v{t1}, v{t3}")
        a.e(f"v_mul_u32_u24 v{t2}, 648, v{t2}\nv_mad_u32_u24 v{t2}, v{t1}, 36, v{t2}\nv_lshl_add_u32 v{t2}, v{t0}, 2, v{t2}")
        a.e(f"v_cmp_gt_u32 vcc, 18, v{t1}\nv_cmp_gt_u32 s[{S_T+2}:{S_T+3}], 9, v{t0}")
        a.e(f"s_and_b64 vcc, vcc, s[{S_T+2}:{S_T+3}]")
        a.e(f"v_mov_b32 v{t3}, {OOB}\nv_cndmask_b32 v{t2}, v{t3}, v{t2}, vcc")
        a.e(f"s_lshl_b32 s{S_T+1}, s{S_WAVE}, 8\ns_add_u32 m0, s{S_T+1}, {lds_base + i*1024}")
        a.e(f"buffer_load_dword v{t2}, s[{R_P}:{R_P+3}], s{S_T} offen lds")
    for t in (t0, t1, t2, t3): V.put(t)
    return n

def wphi_frags(a, V, lane, nx, hstride, lds_base):
    am, ax, t = V.get(), V.get(), V.get()
    a.e(f"v_and_b32 v{t}, 1, v{lane}\nv_mul_u32_u24 v{ax}, {960*hstride}, v{t}")
    a.e(f"v_bfe_u32 v{t}, v{lane}, 2, 2\nv_mad_u32_u24 v{ax}, v{t}, 40, v{ax}")
    a.e(f"v_add_u32 v{ax}, {lds_base}, v{ax}")
    a.e(f"v_bfe_u32 v{t}, v{lane}, 4, 1\nv_lshl_add_u32 v{am}, v{t}, 4, v{ax}")
    a.e(f"v_bfe_u32 v{t}, v{lane}, 1, 1\nv_lshl_add_u32 v{am}, v{t}, 3, v{am}")
    F = [[[V.get(4) for w in range(3)] for T in range(2)] for X in range(nx)]
    cnt = 0
    for X in range(nx):
        for T in range(2):
            for w in range(3):
                for u in range(2):
                    off = X*960 + (8*w + 4*u)*40 + (32 if T else 0)
                    a.e(f"ds_read_b64_tr_b16 {vr(F[X][T][w]+2*u,2)}, v{ax if T else am} offset:{off}")
                    cnt += 1
                    if cnt % 12 == 0: a.e("s_waitcnt lgkmcnt(0)")
    a.e(f"v_bfe_u32 v{t}, v{lane}, 2, 1\nv_lshrrev_b32 v{am}, 5, v{lane}\nv_cmp_eq_u32 vcc, v{t}, v{am}")
    a.e("s_waitcnt lgkmcnt(0)")
    for X in range(nx):
        for T in range(2):
            for w in range(3):
                for i in range(4):
                    r = F[X][T][w] + i
                    a.e(f"v_cndmask_b32 v{r}, 0, v{r}, vcc")
    for x in (am, ax, t): V.put(x)
    return F

def softmax2(a, V, T, Tx, outp, outn):
    p = [T + i for i in range(16)] + [Tx, Tx + 1]
    c = V.get(2); E = V.get(18, 2); N = V.get(18, 2); S = V.get(4, 2)
    mx, mn = c, c + 1
    a.e(f"v_max3_f32 v{mx}, v{p[0]}, v{p[1]}, v{p[2]}")
    a.e(f"v_min3_f32 v{mn}, v{p[0]}, v{p[1]}, v{p[2]}")
    for i in range(3, 17, 2):
        a.e(f"v_max3_f32 v{mx}, v{mx}, v{p[i]}, v{p[i+1]}")
        a.e(f"v_min3_f32 v{mn}, v{mn}, v{p[i]}, v{p[i+1]}")
    a.e(f"v_max_f32 v{mx}, v{mx}, v{p[17]}")
    a.e(f"v_min_f32 v{mn}, v{mn}, v{p[17]}")
    a.e(f"v_pk_mul_f32 {vr(c,2)}, {vr(c,2)}, s[{S_L}:{S_L+1}] neg_lo:[1,0]")
    for i in range(9):
        a.e(f"v_pk_fma_f32 {vr(E+2*i,2)}, {vr(p[2*i],2)}, s[{S_L}:{S_L+1}], {vr(c,2)} op_sel_hi:[1,1,0]")
        a.e(f"v_pk_fma_f32 {vr(N+2*i,2)}, {vr(p[2*i],2)}, s[{S_L}:{S_L+1}], {vr(c,2)} op_sel:[0,0,1] neg_lo:[1,0,0] neg_hi:[1,0,0]")
    for i in range(18):
        a.e(f"v_exp_f32 v{E+i}, v{E+i}")
        a.e(f"v_exp_f32 v{N+i}, v{N+i}")
    a.e(f"v_pk_add_f32 {vr(S,2)}, {vr(E,2)}, {vr(E+2,2)}")
    a.e(f"v_pk_add_f32 {vr(S+2,2)}, {vr(N,2)}, {vr(N+2,2)}")
    for i in range(2, 9):
        a.e(f"v_pk_add_f32 {vr(S,2)}, {vr(S,2)}, {vr(E+2*i,2)}")
        a.e(f"v_pk_add_f32 {vr(S+2,2)}, {vr(S+2,2)}, {vr(N+2*i,2)}")
    a.e(f"v_add_f32 v{S}, v{S}, v{S+1}")
    a.e(f"v_add_f32 v{S+1}, v{S+2}, v{S+3}")
    a.e(f"v_rcp_f32 v{S}, v{S}")
    a.e(f"v_rcp_f32 v{S+1}, v{S+1}")
    for i in range(9):
        a.e(f"v_pk_mul_f32 {vr(E+2*i,2)}, {vr(E+2*i,2)}, {vr(S,2)} op_sel_hi:[1,0]")
        a.e(f"v_pk_mul_f32 {vr(N+2*i,2)}, {vr(N+2*i,2)}, {vr(S,2)} op_sel:[0,1]")
    for i in range(9):
        a.e(f"v_cvt_pk_bf16_f32 v{outp+i}, v{E+2*i}, v{E+2*i+1}")
        a.e(f"v_cvt_pk_bf16_f32 v{outn+i}, v{N+2*i}, v{N+2*i+1}")
    V.put(c, 2); V.put(E, 18); V.put(N, 18); V.put(S, 4)

NS = 4
SLOT = 36864
LDS_MISC = NS * SLOT
S_XB, S_WB, S_WSTEP, S_CI, S_XC, S_WC = 56, 57, 58, 59, 60, 61
S_RB, S_CB, S_ROLE = 62, 63, 64

def dma_chunk(c, vx, vw, xstep):
    base = (c % NS) * SLOT
    g = []
    pre = f"s_lshl_b32 s{S_XC}, s{S_CI}, 7\ns_add_u32 s{S_XC}, s{S_XC}, s{S_XB}\ns_mul_i32 s{S_WC}, s{S_CI}, s{S_WSTEP}\ns_add_u32 s{S_WC}, s{S_WC}, s{S_WB}\n"
    pre += f"s_add_u32 s{S_CI}, s{S_CI}, 1\ns_cmp_eq_u32 s{S_CI}, 9\ns_cselect_b32 s{S_CI}, 0, s{S_CI}\n"
    for i in range(4):
        t = pre if i == 0 else f"s_add_u32 s{S_XC}, s{S_XC}, {xstep}\n"
        t += f"s_add_u32 m0, s65, {base + i*1024}\n"
        t += f"buffer_load_dwordx4 v{vx[i&1]}, s[{R_X}:{R_X+3}], s{S_XC} offen lds"
        g.append(t)
    for j in range(5):
        g.append(f"s_add_u32 m0, s66, {base + 16384 + j*1024}\nbuffer_load_dwordx4 v{vw[j]}, s[{R_W}:{R_W+3}], s{S_WC} offen lds")
    return g

def k1(a, rot):
    k = K(a, "p1_kernel", 256)
    V = Alloc(1, 256)
    lane = V.get(); t0 = V.get(); t1 = V.get(); t2 = V.get(); t3 = V.get()
    a.e(f"v_and_b32 v{lane}, 63, v0\nv_lshrrev_b32 v{t0}, 6, v0\nv_readfirstlane_b32 s{S_WAVE}, v{t0}")
    a.e("s_and_b32 s48, s2, 7\ns_lshr_b32 s49, s2, 3")
    a.e(f"s_and_b32 s{S_RB}, s48, 3\ns_lshl_b32 s{S_RB}, s{S_RB}, 2\ns_and_b32 s50, s49, 3\ns_add_u32 s{S_RB}, s{S_RB}, s50")
    a.e("s_lshr_b32 s51, s48, 2\ns_lshr_b32 s52, s49, 2")
    if rot:
        a.e(f"s_mul_i32 s{S_CI}, s50, {rot[0]}\ns_mul_i32 s53, s52, {rot[1]}\ns_add_u32 s{S_CI}, s{S_CI}, s53")
        a.e(f"s_mul_i32 s53, s{S_CI}, 7282\ns_lshr_b32 s53, s53, 16\ns_mul_i32 s53, s53, 9\ns_sub_u32 s{S_CI}, s{S_CI}, s53")
    else:
        a.e(f"s_mov_b32 s{S_CI}, 0")
    a.e(f"s_lshl_b32 s65, s{S_WAVE}, 12\ns_mul_i32 s66, s{S_WAVE}, 5120")
    a.e(f"s_mov_b32 s{S_L}, {LOG2E}\ns_mov_b32 s{S_L+1}, {LOG2E}")
    vx = [V.get(), V.get()]; vw = [V.get() for _ in range(5)]
    swz = V.get()
    a.e(f"v_and_b32 v{t0}, 7, v{lane}\nv_lshrrev_b32 v{t1}, 4, v{lane}\nv_xor_b32 v{t0}, v{t0}, v{t1}\nv_lshlrev_b32 v{swz}, 4, v{t0}")
    a.e(f"v_lshrrev_b32 v{t3}, 3, v{lane}")
    a.e("s_cmp_ge_u32 s49, 24\ns_cbranch_scc1 L_b1")
    a.e(f"v_mul_u32_u24 v{t0}, 1152, v{t3}\nv_add_u32 v{vx[0]}, v{t0}, v{swz}\nv_xor_b32 v{vx[1]}, 64, v{vx[0]}")
    a.e(f"s_lshl_b32 s53, s{S_RB}, 2\ns_add_u32 s53, s53, s{S_WAVE}\ns_mul_i32 s{S_XB}, s53, 36864")
    a.e(f"s_mov_b32 s{S_WSTEP}, {64*3456}")
    a.e(f"s_cmp_ge_u32 s49, 16\ns_cselect_b32 s{S_ROLE}, 1, 0\ns_cbranch_scc1 L_qsetup")
    a.e(f"s_lshl_b32 s{S_CB}, s51, 2\ns_add_u32 s{S_CB}, s{S_CB}, s52\ns_mul_i32 s{S_WB}, s{S_CB}, 144")
    for j in range(5):
        a.e(f"s_mul_i32 s53, s{S_WAVE}, 320\ns_add_u32 s53, s53, {j*64}\nv_add_u32 v{t0}, s53, v{lane}")
        divc(a, t1, t0, 20, 1280)
        a.e(f"v_mul_u32_u24 v{t2}, 20, v{t1}\nv_sub_u32 v{t0}, v{t0}, v{t2}")
        a.e(f"v_mul_u32_u24 v{t1}, 3456, v{t1}")
        divc(a, t2, t0, 5, 20)
        a.e(f"v_mul_u32_u24 v{t3}, 5, v{t2}\nv_sub_u32 v{t0}, v{t0}, v{t3}")
        a.e(f"v_lshlrev_b32 v{t0}, 4, v{t0}\nv_min_u32 v{t0}, 56, v{t0}\nv_add_u32 v{t1}, v{t1}, v{t0}")
        a.e(f"v_and_b32 v{t0}, 1, v{t2}\nv_mul_u32_u24 v{t0}, 1152, v{t0}\nv_lshrrev_b32 v{t2}, 1, v{t2}\nv_mul_u32_u24 v{t2}, 72, v{t2}")
        a.e(f"v_add3_u32 v{vw[j]}, v{t1}, v{t0}, v{t2}\nv_add_u32 v{vw[j]}, 1152, v{vw[j]}")
    a.e("s_branch L_ago")
    a.label("L_qsetup")
    a.e(f"s_lshl_b32 s{S_CB}, s51, 1\ns_and_b32 s53, s52, 1\ns_add_u32 s{S_CB}, s{S_CB}, s53\ns_mul_i32 s{S_WB}, s{S_CB}, 288")
    for j in range(5):
        a.e(f"s_mul_i32 s53, s{S_WAVE}, 320\ns_add_u32 s53, s53, {j*64}\nv_add_u32 v{t0}, s53, v{lane}")
        divc(a, t1, t0, 10, 1280)
        a.e(f"v_mul_u32_u24 v{t2}, 10, v{t1}\nv_sub_u32 v{t0}, v{t0}, v{t2}")
        a.e(f"v_and_b32 v{t2}, 1, v{t1}\nv_lshrrev_b32 v{t1}, 1, v{t1}\nv_mul_u32_u24 v{t1}, 3456, v{t1}\nv_mul_u32_u24 v{t2}, 144, v{t2}")
        a.e(f"v_cmp_gt_u32 vcc, 9, v{t0}\nv_lshlrev_b32 v{t0}, 4, v{t0}\nv_add3_u32 v{t1}, v{t1}, v{t0}, v{t2}")
        a.e(f"v_mov_b32 v{t3}, {OOB}\nv_cndmask_b32 v{vw[j]}, v{t3}, v{t1}, vcc")
    a.label("L_ago")
    a.e("s_waitcnt lgkmcnt(0)")
    srd(a, R_X, S_AX, 2048*1152); srd(a, R_W, S_W, 576*3456); srd(a, R_WS, S_WS, WS_SIZE); srd(a, R_P, S_WPHI, 32*648)
    k.stamp(1)
    for c in range(NS - 1):
        for g in dma_chunk(c, vx, vw, 9216): a.e(g)
    a.e(f"s_lshl_b32 s67, s{S_CB}, 2")
    nwp = wphi_dma(a, V, lane, 4, 67, LDS_MISC)
    xa = [V.get() for _ in range(4)]; wa = V.get()
    xs = [V.get() for _ in range(4)]; ws_ = V.get()
    a.e(f"v_and_b32 v{t0}, 31, v{lane}\nv_lshrrev_b32 v{t1}, 5, v{lane}\nv_bfe_u32 v{t2}, v{lane}, 1, 3\nv_xor_b32 v{t1}, v{t1}, v{t2}")
    a.e(f"v_lshlrev_b32 v{t0}, 7, v{t0}\nv_lshl_add_u32 v{t0}, v{t1}, 4, v{t0}\nv_add_u32 v{xa[0]}, s65, v{t0}")
    for ks in range(1, 4): a.e(f"v_xor_b32 v{xa[ks]}, {32*ks}, v{xa[0]}")
    a.e(f"v_lshrrev_b32 v{t0}, 5, v{lane}\nv_bfe_u32 v{t1}, v{lane}, 2, 2\nv_lshl_add_u32 v{t0}, v{t0}, 3, v{t1}\nv_mul_u32_u24 v{t0}, 320, v{t0}")
    a.e(f"v_and_b32 v{t1}, 1, v{lane}\nv_mul_u32_u24 v{t1}, 160, v{t1}\nv_bfe_u32 v{t2}, v{lane}, 4, 1\nv_lshl_add_u32 v{t1}, v{t2}, 4, v{t1}")
    a.e(f"v_bfe_u32 v{t2}, v{lane}, 1, 1\nv_lshl_add_u32 v{t1}, v{t2}, 3, v{t1}\nv_add3_u32 v{wa}, v{t0}, v{t1}, 0\nv_add_u32 v{wa}, 16384, v{wa}")
    acc = V.get(80, 4)
    FX = [V.get(4), V.get(4)]; FW = [V.get(20, 4), V.get(20, 4)]
    def reads(s):
        c, ks = divmod(s, 4); b = s & 1
        r = []
        if ks == 0:
            base = (c % NS) * SLOT
            pre = "\n".join(f"v_add_u32 v{xs[i]}, {base}, v{xa[i]}" for i in range(4)) + f"\nv_add_u32 v{ws_}, {base}, v{wa}\n"
        else: pre = ""
        r.append(pre + f"ds_read_b128 {vr(FX[b],4)}, v{xs[ks]}")
        for t in range(5):
            for u in range(2):
                r.append(f"ds_read_b64_tr_b16 {vr(FW[b]+4*t+2*u,2)}, v{ws_} offset:{(16*ks+4*u)*320 + 32*t}")
        return r
    q = []
    for c in range(NS - 1): q += [("c", c)] * 9
    q += [("p", 0)] * nwp
    def wait_chunk(c, also_p=False):
        last = max(i for i, x in enumerate(q) if x == ("c", c) or (also_p and x[0] == "p"))
        a.e(f"s_waitcnt vmcnt({len(q) - 1 - last})")
    wait_chunk(0); a.e("s_barrier")
    k.stamp(2)
    for r in reads(0): a.e(r)
    pend = []
    for s in range(36):
        c, ks = divmod(s, 4); b = s & 1
        fill = []
        if s + 1 < 36:
            if ks == 3:
                wait_chunk(c + 1, also_p=(c + 1 == NS - 1)); a.e("s_barrier")
                nc = c - 1 + NS
                if c == 0: nc = NS - 1
                elif True: nc = c - 1 + NS
                if nc < 9 and not any(x == ("c", nc) for x in q) :
                    pend = dma_chunk(nc, vx, vw, 9216); q += [("c", nc)] * 9
            fill = reads(s + 1)
        a.e("s_waitcnt lgkmcnt(0)")
        mf = [f"v_mfma_f32_32x32x16_bf16 {vr(acc+16*t,16)}, {vr(FW[b]+4*t,4)}, {vr(FX[b],4)}, {'0' if s == 0 else vr(acc+16*t,16)}" for t in range(5)]
        seq = []
        for t in range(5):
            seq.append(mf[t])
            if t < 3: seq += fill[4*t:4*t+4]
            else:
                for _ in range(2 if t == 3 else 1):
                    if pend: seq.append(pend.pop(0))
        for x in seq: a.e(x)
        if ks == 2:
            while pend: a.e(pend.pop(0))
    k.stamp(3)
    for x in FX: V.put(x, 4)
    for x in FW: V.put(x, 20)
    for x in xa + xs + [wa, ws_]: V.put(x)
    a.e(f"s_cmp_eq_u32 s{S_ROLE}, 1\ns_cbranch_scc1 L_qepi")
    hist_save = list(a.hist)
    import copy
    V2 = copy.deepcopy(V)
    F = wphi_frags(a, V, lane, 2, 2, LDS_MISC)
    pos = lambda kk: kk if kk < 32 else kk + 4
    P = V.get(22, 2)
    PH = V.get(56, 4)
    for X in range(2):
        for i in range(9):
            a.e(f"v_cvt_pk_bf16_f32 v{P+10*X+i}, v{acc+pos(18*X+2*i)}, v{acc+pos(18*X+2*i+1)}")
    for r in (9, 19, 20, 21): a.e(f"v_mov_b32 v{P+r}, 0")
    for X in range(2):
        for i in range(9):
            a.e(f"v_cvt_pk_bf16_f32 v{PH+36+10*X+i}, v{acc+40+pos(18*X+2*i)}, v{acc+40+pos(18*X+2*i+1)}")
        a.e(f"v_mov_b32 v{PH+36+10*X+9}, 0x3f80")
    V.put(acc, 80)
    T = [V.get(16, 4), V.get(16, 4)]; Tx = [V.get(16, 4), V.get(16, 4)]
    for X in range(2):
        for (D, tt) in ((T[X], 0), (Tx[X], 1)):
            for w in range(3):
                a.e(f"v_mfma_f32_32x32x16_bf16 {vr(D,16)}, {vr(F[X][tt][w],4)}, {vr(P+10*X+4*w,4)}, {'0' if w == 0 else vr(D,16)}")
    for X in range(2):
        for tt in range(2):
            for w in range(3): V.put(F[X][tt][w], 4)
    V.put(P, 22)
    k.stamp(4)
    for X in range(2):
        softmax2(a, V, T[X], Tx[X], PH + 18*X, PH + 18*X + 9)
    k.stamp(5)
    for X in range(2): V.put(T[X], 16); V.put(Tx[X], 16)
    a.e(f"v_and_b32 v{t0}, 31, v{lane}\ns_lshl_b32 s53, s{S_WAVE}, 5\nv_add_u32 v{t0}, s53, v{t0}\nv_mul_u32_u24 v{t0}, 464, v{t0}")
    a.e(f"v_lshrrev_b32 v{t1}, 5, v{lane}\nv_mul_u32_u24 v{t1}, 224, v{t1}\nv_add_u32 v{t0}, v{t0}, v{t1}")
    a.e("s_barrier")
    for i in range(14):
        a.e(f"ds_write_b128 v{t0}, {vr(PH+4*i,4)} offset:{16*i}")
    a.e(f"v_bfe_u32 v{t1}, v{lane}, 2, 3\nv_lshrrev_b32 v{t2}, 5, v{lane}\nv_lshl_add_u32 v{t1}, v{t2}, 3, v{t1}\nv_mul_u32_u24 v{t1}, 928, v{t1}")
    a.e(f"v_and_b32 v{t2}, 3, v{lane}\nv_lshl_add_u32 v{t1}, v{t2}, 3, v{t1}")
    a.e(f"s_lshr_b32 s53, s{S_WAVE}, 1\ns_mul_i32 s53, s53, 224\ns_and_b32 s54, s{S_WAVE}, 1\ns_mul_i32 s55, s54, 72\ns_add_u32 s55, s55, s53")
    a.e(f"s_mul_i32 s54, s54, 40\ns_add_u32 s54, s54, s53\ns_add_u32 s54, s54, 144")
    a.e(f"v_add_u32 v{t2}, s54, v{t1}\nv_add_u32 v{t1}, s55, v{t1}")
    a.e("s_waitcnt lgkmcnt(0)\ns_barrier")
    FA = [V.get(12, 4) for _ in range(4)]; FB = [V.get(8, 4) for _ in range(4)]
    KV = V.get(24, 4)
    for ks in range(4):
        for t in range(3):
            for u in range(2):
                a.e(f"ds_read_b64_tr_b16 {vr(FA[ks]+4*t+2*u,2)}, v{t1} offset:{(32*ks+u)*464 + 32*t}")
        for t in range(2):
            for u in range(2):
                a.e(f"ds_read_b64_tr_b16 {vr(FB[ks]+4*t+2*u,2)}, v{t2} offset:{(32*ks+u)*464 + 32*t}")
        if ks >= 1:
            a.e("s_waitcnt lgkmcnt(10)")
            for t in range(3):
                for u in range(2):
                    D = KV + 4*(2*t+u)
                    a.e(f"v_mfma_f32_16x16x32_bf16 {vr(D,4)}, {vr(FA[ks-1]+4*t,4)}, {vr(FB[ks-1]+4*u,4)}, {'0' if ks == 1 else vr(D,4)}")
    a.e("s_waitcnt lgkmcnt(0)")
    for t in range(3):
        for u in range(2):
            D = KV + 4*(2*t+u)
            a.e(f"v_mfma_f32_16x16x32_bf16 {vr(D,4)}, {vr(FA[3]+4*t,4)}, {vr(FB[3]+4*u,4)}, {vr(D,4)}")
    o = [V.get() for _ in range(4)]
    a.e(f"v_and_b32 v{t0}, 15, v{lane}\nv_lshrrev_b32 v{t1}, 4, v{lane}\nv_mul_u32_u24 v{t2}, 320, v{t1}\nv_lshl_add_u32 v{o[0]}, v{t0}, 4, v{t2}")
    a.e(f"v_mov_b32 v{t3}, {OOB}\nv_cmp_gt_u32 vcc, 4, v{t0}\nv_cndmask_b32 v{o[1]}, v{t3}, v{o[0]}, vcc")
    a.e(f"v_cmp_eq_u32 vcc, 0, v{t1}\nv_cndmask_b32 v{o[2]}, v{t3}, v{o[0]}, vcc\nv_cndmask_b32 v{o[3]}, v{t3}, v{o[1]}, vcc")
    a.e(f"s_lshl_b32 s53, s{S_CB}, 1\ns_lshr_b32 s54, s{S_WAVE}, 1\ns_add_u32 s53, s53, s54\ns_lshl_b32 s53, s53, 4\ns_add_u32 s53, s53, s{S_RB}\ns_mul_i32 s53, s53, 5760")
    a.e(f"s_and_b32 s54, s{S_WAVE}, 1\ns_mul_i32 s54, s54, 2880\ns_add_u32 s53, s53, s54\ns_add_u32 s53, s53, {WS_PART}")
    for t in range(3):
        for u in range(2):
            D = KV + 4*(2*t+u)
            a.e(f"buffer_store_dwordx4 {vr(D,4)}, v{o[(2 if t == 2 else 0)+u]}, s[{R_WS}:{R_WS+3}], s53 offen offset:{t*1280 + u*256}")
    k.stamp(6)
    a.e(f"s_branch L_fin_{k.name}")
    vmax = V.max
    V = V2
    a.label("L_qepi"); a.hist = hist_save
    Q = V.get(40, 2)
    for X in range(4):
        for i in range(9):
            a.e(f"v_cvt_pk_bf16_f32 v{Q+10*X+i}, v{acc+18*X+2*i}, v{acc+18*X+2*i+1}")
    a.e(f"v_and_b32 v{t0}, 31, v{lane}\nv_lshrrev_b32 v{t1}, 5, v{lane}\nv_mul_u32_u24 v{t1}, 18432, v{t1}")
    a.e(f"v_lshl_add_u32 v{t2}, v{t0}, 4, v{t1}\nv_lshl_add_u32 v{t3}, v{t0}, 2, v{t1}")
    a.e(f"s_lshl_b32 s53, s{S_RB}, 4\ns_lshl_b32 s54, s{S_CB}, 2\ns_add_u32 s53, s53, s54\ns_lshl_b32 s53, s53, 2\ns_add_u32 s53, s53, s{S_WAVE}\ns_mul_i32 s53, s53, 2304")
    a.e(f"s_add_u32 s53, s53, {WS_Q}\ns_add_u32 s54, s53, 9216")
    for X in range(4):
        so = 53 + (X >> 1)
        for p in range(2):
            a.e(f"buffer_store_dwordx4 {vr(Q+10*X+4*p,4)}, v{t2}, s[{R_WS}:{R_WS+3}], s{so} offen offset:{(X&1)*512 + p*1024}")
        a.e(f"buffer_store_dword v{Q+10*X+8}, v{t3}, s[{R_WS}:{R_WS+3}], s{so} offen offset:{2048 + (X&1)*128}")
    k.stamp(6)
    a.e(f"s_branch L_fin_{k.name}")
    V = Alloc(1, 256)
    for r in [lane, t0, t1, t2, t3] + vx + vw + [swz]: V.free[r] = False
    a.label("L_b1"); a.hist = []
    a.e(f"v_mul_u32_u24 v{t0}, 73728, v{t3}\nv_add_u32 v{vx[0]}, v{t0}, v{swz}\nv_xor_b32 v{vx[1]}, 64, v{vx[0]}")
    a.e(f"s_lshl_b32 s67, s{S_RB}, 2\ns_add_u32 s67, s67, s{S_WAVE}\ns_mul_i32 s{S_XB}, s67, 1152")
    a.e(f"s_mov_b32 s{S_WSTEP}, 128")
    a.e(f"s_lshl_b32 s{S_CB}, s51, 1\ns_and_b32 s53, s52, 1\ns_add_u32 s{S_CB}, s{S_CB}, s53")
    a.e(f"s_and_b32 s53, s{S_WAVE}, 1\ns_mul_i32 s54, s53, 40\ns_mul_i32 s{S_WB}, s{S_CB}, 80\ns_add_u32 s{S_WB}, s{S_WB}, s54\ns_mul_i32 s{S_WB}, s{S_WB}, 1152")
    a.e(f"s_lshl_b32 s53, s53, 6")
    a.e(f"v_mul_u32_u24 v{t0}, 1152, v{t3}\nv_add_u32 v{t0}, v{t0}, v{swz}\nv_xor_b32 v{vw[0]}, s53, v{t0}")
    for j in range(1, 5):
        a.e(f"v_xor_b32 v{vw[j]}, 64, v{vw[j-1]}\nv_add_u32 v{vw[j]}, 9216, v{vw[j]}")
    a.e("s_waitcnt lgkmcnt(0)")
    srd(a, R_X, S_BX, 2048*1152); srd(a, R_WS, S_WS, WS_SIZE)
    a.e(f"s_cmp_ge_u32 s{S_WAVE}, 2\ns_cselect_b32 s54, s{S_HIM}, s{S_HRE}\ns_cselect_b32 s55, s{S_HIM+1}, s{S_HRE+1}")
    srd(a, R_W, 54, 289*1152)
    k.stamp(1)
    for c in range(NS - 1):
        for g in dma_chunk(c, vx, vw, 8*73728): a.e(g)
    la = [V.get(), V.get()]; xs = [V.get(), V.get()]; wsr = [V.get(), V.get()]
    a.e(f"v_and_b32 v{t0}, 15, v{lane}\nv_lshrrev_b32 v{t1}, 4, v{lane}\nv_bfe_u32 v{t2}, v{lane}, 1, 3\nv_xor_b32 v{t1}, v{t1}, v{t2}")
    a.e(f"v_lshlrev_b32 v{t0}, 7, v{t0}\nv_lshl_add_u32 v{la[0]}, v{t1}, 4, v{t0}\nv_xor_b32 v{la[1]}, 64, v{la[0]}")
    TC = [V.get(4), V.get(4)]; TS = [V.get(4), V.get(4)]; TN = [V.get(4), V.get(4)]
    e0, e1, e2, e3 = V.get(), V.get(), V.get(), V.get()
    a.e(f"v_and_b32 v{t0}, 15, v{lane}\nv_lshrrev_b32 v{t1}, 4, v{lane}\nv_lshlrev_b32 v{t1}, 8, v{t1}\nv_add_u32 v{t1}, s67, v{t1}")
    for kt in range(2):
        if kt: a.e(f"v_add_u32 v{t0}, 16, v{t0}")
        for jp in range(4):
            for h, (ec, es) in enumerate(((e0, e1), (e2, e3))):
                j = 2*jp + h
                s1off = 64*(16*(j//4) + j % 4)
                a.e(f"v_add_u32 v{t2}, {s1off}, v{t1}\nv_mul_u32_u24 v{t2}, v{t2}, v{t0}\nv_and_b32 v{t2}, 2047, v{t2}\nv_cvt_f32_u32 v{t2}, v{t2}\nv_mul_f32 v{t2}, 0x3a000000, v{t2}")
                a.e(f"v_cos_f32 v{ec}, v{t2}\nv_sin_f32 v{es}, v{t2}")
            a.e(f"v_cvt_pk_bf16_f32 v{TC[kt]+jp}, v{e0}, v{e2}\nv_cvt_pk_bf16_f32 v{TS[kt]+jp}, v{e1}, v{e3}")
            a.e(f"v_xor_b32 v{TN[kt]+jp}, 0x80008000, v{TS[kt]+jp}")
    acc = V.get(80, 4)
    FX = [V.get(8, 4), V.get(8, 4)]; FW = [V.get(40, 4), V.get(40, 4)]
    def breads(s):
        c, ks = divmod(s, 2); b = s & 1
        r = []
        pre = ""
        if ks == 0:
            base = (c % NS) * SLOT
            pre = f"s_add_u32 s53, s65, {base}\n" + "\n".join(f"v_add_u32 v{xs[i]}, s53, v{la[i]}\nv_add_u32 v{wsr[i]}, {base+16384}, v{la[i]}" for i in range(2)) + "\n"
        for rt in range(2):
            r.append((pre if rt == 0 else "") + f"ds_read_b128 {vr(FX[b]+4*rt,4)}, v{xs[ks]} offset:{2048*rt}")
        for ct in range(10):
            r.append(f"ds_read_b128 {vr(FW[b]+4*ct,4)}, v{wsr[ks]} offset:{2048*ct}")
        return r
    q = []
    for c in range(NS - 1): q += [("c", c)] * 9
    wait_chunk(0); a.e("s_barrier")
    k.stamp(2)
    for r in breads(0): a.e(r)
    pend = []
    for s in range(18):
        c, ks = divmod(s, 2); b = s & 1
        fill = []
        if s + 1 < 18:
            if ks == 1:
                wait_chunk(c + 1); a.e("s_barrier")
                nc = c - 1 + NS
                if nc < 9 and not any(x == ("c", nc) for x in q):
                    pend = dma_chunk(nc, vx, vw, 8*73728); q += [("c", nc)] * 9
            fill = breads(s + 1)
        a.e("s_waitcnt lgkmcnt(0)")
        seq = []
        for i in range(20):
            ct, rt = divmod(i, 2)
            D = acc + 8*ct + 4*rt
            seq.append(f"v_mfma_f32_16x16x32_bf16 {vr(D,4)}, {vr(FX[b]+4*rt,4)}, {vr(FW[b]+4*ct,4)}, {'0' if s == 0 else vr(D,4)}")
            if i < 12 and fill: seq.append(fill.pop(0))
            elif i >= 12 and i % 2 == 0 and pend: seq.append(pend.pop(0))
        for x in seq: a.e(x)
        if ks == 0:
            while pend: a.e(pend.pop(0))
    k.stamp(3)
    for x in FX: V.put(x, 8)
    for x in FW: V.put(x, 40)
    BF = V.get(40, 4)
    for ct in range(10):
        for i in range(4):
            a.e(f"v_cvt_pk_bf16_f32 v{BF+4*ct+i}, v{acc+8*ct+2*i}, v{acc+8*ct+2*i+1}")
    for qq in range(5):
        for kt in range(2):
            Dr = acc + 16*qq + 8*kt; Di = Dr + 4
            X = BF + 4*qq; Y = BF + 4*(5+qq)
            a.e(f"v_mfma_f32_16x16x32_bf16 {vr(Dr,4)}, {vr(TC[kt],4)}, {vr(X,4)}, 0")
            a.e(f"v_mfma_f32_16x16x32_bf16 {vr(Di,4)}, {vr(TN[kt],4)}, {vr(X,4)}, 0")
            a.e(f"v_mfma_f32_16x16x32_bf16 {vr(Dr,4)}, {vr(TS[kt],4)}, {vr(Y,4)}, {vr(Dr,4)}")
            a.e(f"v_mfma_f32_16x16x32_bf16 {vr(Di,4)}, {vr(TC[kt],4)}, {vr(Y,4)}, {vr(Di,4)}")
    a.e(f"v_and_b32 v{t0}, 15, v{lane}\nv_lshrrev_b32 v{t1}, 4, v{lane}\nv_mul_u32_u24 v{t1}, 1280, v{t1}\nv_lshl_add_u32 v{t0}, v{t0}, 2, v{t1}")
    a.e(f"s_mul_i32 s53, s{S_WAVE}, 10240\nv_add_u32 v{t0}, s53, v{t0}")
    a.e("s_barrier")
    GP = V.get(40, 4)
    for qq in range(5):
        for kt in range(2):
            for i in range(4):
                Dr = acc + 16*qq + 8*kt
                r = GP + 8*qq + 4*kt + i
                a.e(f"v_cvt_pk_bf16_f32 v{r}, v{Dr+i}, v{Dr+4+i}")
                a.e(f"ds_write_b32 v{t0}, v{r} offset:{((16*kt+i)*80 + 16*qq)*4}")
    a.e(f"v_lshlrev_b32 v{t1}, 2, v0")
    a.e("s_waitcnt lgkmcnt(0)\ns_barrier")
    for i in range(10):
        a.e(f"ds_read2st64_b32 {vr(acc+4*i,2)}, v{t1} offset0:{4*i} offset1:{4*i+40}")
        a.e(f"ds_read2st64_b32 {vr(acc+4*i+2,2)}, v{t1} offset0:{4*i+80} offset1:{4*i+120}")
        if i == 6: a.e("s_waitcnt lgkmcnt(0)")
    a.e(f"s_mul_i32 s53, s{S_RB}, 320\ns_mul_i32 s54, s{S_CB}, 80\ns_add_u32 s53, s53, s54\ns_lshl_b32 s53, s53, 4\ns_add_u32 s53, s53, {WS_G}")
    go = [V.get() for _ in range(10)]
    for i in range(10):
        a.e(f"v_add_u32 v{t0}, {256*i}, v0")
        divc(a, t2, t0, 80, 2560)
        a.e(f"v_mul_u32_u24 v{t2}, {5120-80}, v{t2}\nv_add_lshl_u32 v{go[i]}, v{t2}, v{t0}, 4")
    a.e("s_waitcnt lgkmcnt(0)")
    for i in range(10):
        a.e(f"buffer_store_dwordx4 {vr(acc+4*i,4)}, v{go[i]}, s[{R_WS}:{R_WS+3}], s53 offen")
    k.stamp(6)
    k.end(0, 256, 256)
    return 163840


def k2(a):
    k = K(a, "p2_kernel", 256)
    V = Alloc(1, 256)
    lane = V.get(); t0 = V.get(); t1 = V.get(); t2 = V.get(); t3 = V.get()
    L_WP, L_KV, L_G = 0, 2048, 8192
    S_HP, S_K1, S_C2 = 63, 64, 65
    a.e(f"v_and_b32 v{lane}, 63, v0\nv_lshrrev_b32 v{t0}, 6, v0\nv_readfirstlane_b32 s{S_WAVE}, v{t0}")
    a.e(f"s_and_b32 s48, s2, 7\ns_lshl_b32 s{S_HP}, s48, 1\ns_bfe_u32 s49, s2, 0x10003\ns_add_u32 s{S_HP}, s{S_HP}, s49\ns_lshr_b32 s{S_RB}, s2, 4")
    a.e(f"s_lshl_b32 s{S_K1}, s48, 2\ns_bfe_u32 s49, s2, 0x20003\ns_add_u32 s{S_K1}, s{S_K1}, s49\ns_lshr_b32 s{S_C2}, s2, 5")
    a.e(f"s_mov_b32 s{S_L}, {LOG2E}\ns_mov_b32 s{S_L+1}, {LOG2E}")
    a.e("s_waitcnt lgkmcnt(0)")
    srd(a, R_WS, S_WS, WS_SIZE); srd(a, R_P, S_WPHI, 32*648); srd(a, R_OUT, S_OUT, 2048*2304)
    a.e(f"s_lshl_b32 s67, s{S_HP}, 1")
    nwp = wphi_dma(a, V, lane, 2, 67, L_WP)
    Q = V.get(12, 4)
    a.e(f"s_lshl_b32 s53, s{S_RB}, 4\ns_add_u32 s53, s53, s{S_HP}\ns_lshl_b32 s53, s53, 2\ns_add_u32 s53, s53, s{S_WAVE}\ns_mul_i32 s53, s53, 2304\ns_add_u32 s53, s53, {WS_Q}")
    a.e(f"v_lshlrev_b32 v{t0}, 4, v{lane}\nv_lshlrev_b32 v{t1}, 2, v{lane}")
    a.e(f"buffer_load_dwordx4 {vr(Q,4)}, v{t0}, s[{R_WS}:{R_WS+3}], s53 offen")
    a.e(f"buffer_load_dwordx4 {vr(Q+4,4)}, v{t0}, s[{R_WS}:{R_WS+3}], s53 offen offset:1024")
    a.e(f"buffer_load_dword v{Q+8}, v{t1}, s[{R_WS}:{R_WS+3}], s53 offen offset:2048")
    for i in (9, 10, 11): a.e(f"v_mov_b32 v{Q+i}, 0")
    PL = V.get(128, 4)
    u0, u1 = V.get(), V.get()
    a.e(f"v_lshlrev_b32 v{u0}, 4, v0\nv_add_u32 v{t0}, 4096, v{u0}\nv_mov_b32 v{t3}, {OOB}\nv_cmp_gt_u32 vcc, 104, v0\nv_cndmask_b32 v{u1}, v{t3}, v{t0}, vcc")
    a.e(f"s_mul_i32 s53, s{S_HP}, {16*5760}\ns_add_u32 s53, s53, {WS_PART}")
    for r in range(16):
        a.e(f"buffer_load_dwordx4 {vr(PL+4*r,4)}, v{u0}, s[{R_WS}:{R_WS+3}], s53 offen")
        a.e(f"buffer_load_dwordx4 {vr(PL+64+4*r,4)}, v{u1}, s[{R_WS}:{R_WS+3}], s53 offen")
        if r < 15: a.e("s_add_u32 s53, s53, 5760")
    ga, gb = V.get(), V.get()
    a.e(f"v_bfe_u32 v{t0}, v{lane}, 2, 2\nv_and_b32 v{t1}, 3, v{lane}\nv_lshl_add_u32 v{ga}, v{t0}, 3, v{t1}\nv_and_b32 v{gb}, 15, v{lane}\nv_add_u32 v{gb}, 64, v{gb}")
    a.e(f"s_mul_i32 s53, s{S_C2}, 72\ns_cmp_ge_u32 s{S_C2}, 4\ns_cselect_b32 s54, -16, 16\ns_cselect_b32 s55, 576, 0")
    a.e(f"s_mul_i32 s53, s53, s54\ns_lshl_b32 s55, s55, 4\ns_add_u32 s53, s53, s55")
    a.e(f"v_lshrrev_b32 v{t0}, 4, v{lane}\nv_mul_u32_u24 v{t0}, 5120, v{t0}\nv_add_u32 v{t0}, s53, v{t0}")
    a.e(f"v_mul_lo_u32 v{ga}, v{ga}, s54\nv_mul_lo_u32 v{gb}, v{gb}, s54\nv_add_u32 v{ga}, v{ga}, v{t0}\nv_add_u32 v{gb}, v{gb}, v{t0}")
    a.e(f"v_and_b32 v{t1}, 8, v{lane}\nv_cmp_eq_u32 vcc, 0, v{t1}\nv_cndmask_b32 v{gb}, v{t3}, v{gb}, vcc")
    a.e(f"s_lshl_b32 s55, s{S_K1}, 2\ns_add_u32 s55, s55, s{S_WAVE}\ns_mul_i32 s55, s55, {4*5120}\ns_add_u32 s55, s55, {WS_G}")
    a.e(f"s_lshl_b32 s56, s{S_WAVE}, 10")
    for mt in range(5):
        if mt < 4:
            a.e(f"s_mul_i32 s57, s54, {32*(mt>>1) + 4*(mt&1)}\nv_add_u32 v{t1}, s57, v{ga}")
        a.e(f"s_add_u32 m0, s56, {L_G + mt*4096}")
        a.e(f"buffer_load_dwordx4 v{t1 if mt < 4 else gb}, s[{R_WS}:{R_WS+3}], s55 offen lds")
    V.put(ga); V.put(gb)
    k.stamp(1)
    a.e(f"v_mov_b32 v{t0}, 0\nv_mov_b32 v{t1}, 0\nv_lshlrev_b32 v{t2}, 3, v0")
    a.e(f"ds_write_b64 v{t2}, {vr(t0,2)} offset:{L_KV}\nds_write_b64 v{t2}, {vr(t0,2)} offset:{L_KV+2048}")
    a.e(f"s_waitcnt vmcnt({3+32+5}) lgkmcnt(0)\ns_barrier")
    F = wphi_frags(a, V, lane, 1, 1, L_WP)
    a.e(f"s_waitcnt vmcnt({32+5})")
    T = V.get(16, 4); Tx = V.get(16, 4)
    for (D, tt) in ((T, 0), (Tx, 1)):
        for w in range(3):
            a.e(f"v_mfma_f32_32x32x16_bf16 {vr(D,16)}, {vr(F[0][tt][w],4)}, {vr(Q+4*w,4)}, {'0' if w == 0 else vr(D,16)}")
    for tt in range(2):
        for w in range(3): V.put(F[0][tt][w], 4)
    V.put(Q, 12)
    R = V.get(22, 2)
    softmax2(a, V, T, Tx, R, R + 10)
    for r in (9, 19, 20, 21): a.e(f"v_mov_b32 v{R+r}, 0")
    for j in range(9): a.e(f"v_permlane32_swap_b32 v{R+j}, v{R+10+j}")
    k.stamp(2)
    for r in range(1, 16):
        a.e(f"s_waitcnt vmcnt({5 + 2*(15-r)})")
        for h in range(2):
            for p in range(2):
                a.e(f"v_pk_add_f32 {vr(PL+64*h+2*p,2)}, {vr(PL+64*h+2*p,2)}, {vr(PL+64*h+4*r+2*p,2)}")
    k.stamp(3)
    for h in range(2):
        a.e(f"v_add_u32 v{t0}, {256*h}, v0")
        divc(a, t1, t0, 20, 512)
        a.e(f"v_mul_u32_u24 v{t2}, 20, v{t1}\nv_sub_u32 v{t0}, v{t0}, v{t2}\nv_mul_u32_u24 v{t0}, 96, v{t0}")
        a.e(f"v_cmp_le_u32 vcc, 9, v{t1}\nv_subrev_u32 v{t2}, 9, v{t1}\nv_cndmask_b32 v{t1}, v{t1}, v{t2}, vcc\nv_add_u32 v{t2}, 1920, v{t0}\nv_cndmask_b32 v{t0}, v{t0}, v{t2}, vcc")
        a.e(f"v_lshl_add_u32 v{t0}, v{t1}, 3, v{t0}\nv_add_u32 v{t2}, 12, v{t0}")
        a.e(f"v_cmp_le_u32 vcc, 5, v{t1}\nv_cndmask_b32 v{t3}, v{t0}, v{t2}, vcc\nv_cmp_le_u32 vcc, 4, v{t1}\nv_cndmask_b32 v{t0}, v{t0}, v{t2}, vcc")
        a.e(f"v_cvt_pk_bf16_f32 v{PL+64*h}, v{PL+64*h}, v{PL+64*h+1}\nv_cvt_pk_bf16_f32 v{PL+64*h+1}, v{PL+64*h+2}, v{PL+64*h+3}")
        if h: a.e(f"v_cmp_gt_u32 vcc, 104, v0\ns_and_saveexec_b64 s[54:55], vcc")
        a.e(f"ds_write_b32 v{t3}, v{PL+64*h} offset:{L_KV}\nds_write_b32 v{t0}, v{PL+64*h+1} offset:{L_KV+4}")
        if h: a.e("s_mov_b64 exec, s[54:55]")
    V.put(PL, 128)
    DF = V.get(16, 4)
    e0, e1 = V.get(), V.get()
    a.e(f"v_and_b32 v{t0}, 15, v{lane}\ns_lshl_b32 s53, s{S_WAVE}, 4\nv_add_u32 v{t0}, s53, v{t0}\nv_lshrrev_b32 v{t1}, 4, v{lane}\nv_lshlrev_b32 v{t1}, 2, v{t1}")
    for ks in range(4):
        for jj in range(4):
            a.e(f"v_add_u32 v{t2}, {16*ks+jj}, v{t1}\nv_mul_u32_u24 v{t2}, v{t2}, v{t0}\nv_and_b32 v{t2}, 63, v{t2}\nv_cvt_f32_u32 v{t2}, v{t2}\nv_mul_f32 v{t2}, 0x3c800000, v{t2}")
            a.e(f"v_cos_f32 v{e0}, v{t2}\nv_sin_f32 v{e1}, v{t2}\nv_cvt_pk_bf16_f32 v{DF+4*ks+jj}, v{e0}, v{e1}")
    V.put(e0); V.put(e1)
    a.e(f"v_bfe_u32 v{t0}, v{lane}, 3, 2\nv_and_b32 v{t1}, 3, v{lane}\nv_lshl_add_u32 v{t0}, v{t0}, 2, v{t1}\nv_bfe_u32 v{t1}, v{lane}, 2, 1")
    a.e(f"v_lshl_add_u32 v{t2}, v{t1}, 3, v{t0}\nv_lshl_add_u32 v{t1}, v{t1}, 1, 8\nv_cmp_lt_u32 vcc, v{t0}, v{t1}\nv_cndmask_b32 v{t2}, 19, v{t2}, vcc")
    a.e(f"v_cmp_ne_u32 vcc, 10, v{t0}\nv_cndmask_b32 v{t2}, 18, v{t2}, vcc\nv_mul_u32_u24 v{t2}, 96, v{t2}\nv_lshrrev_b32 v{t0}, 5, v{lane}\nv_mad_u32_u24 v{t2}, v{t0}, 48, v{t2}")
    a.e("s_waitcnt vmcnt(0) lgkmcnt(0)\ns_barrier")
    KF = V.get(24, 4)
    for X in range(2):
        for w in range(3):
            a.e(f"ds_read_b128 {vr(KF+12*X+4*w,4)}, v{t2} offset:{L_KV + 1920*X + 16*w}")
    GF = V.get(80, 4)
    a.e(f"v_lshlrev_b32 v{t3}, 4, v{lane}")
    for i in range(8): a.e(f"ds_read_b128 {vr(GF+4*i,4)}, v{t3} offset:{L_G + 1024*i}")
    a.e("s_waitcnt lgkmcnt(8)")
    for X, D in enumerate((T, Tx)):
        for w in range(3):
            a.e(f"v_mfma_f32_32x32x16_bf16 {vr(D,16)}, {vr(KF+12*X+4*w,4)}, {vr(R+10*X+4*w,4)}, {'0' if w == 0 else vr(D,16)}")
    a.e("s_waitcnt lgkmcnt(0)")
    for i in range(8, 20): a.e(f"ds_read_b128 {vr(GF+4*i,4)}, v{t3} offset:{L_G + 1024*i}")
    a.e(f"v_bfe_u32 v{t0}, v{lane}, 4, 1\nv_lshlrev_b32 v{t1}, 14, v{t0}\nv_lshlrev_b32 v{t0}, 11, v{t0}\nv_and_b32 v{t2}, 15, v{lane}\nv_lshl_add_u32 v{t1}, v{t2}, 4, v{t1}\nv_lshl_add_u32 v{t0}, v{t2}, 3, v{t0}")
    a.e(f"v_lshrrev_b32 v{t2}, 5, v{lane}\nv_lshl_add_u32 v{t1}, v{t2}, 8, v{t1}\nv_cmp_eq_u32 vcc, 1, v{t2}\nv_mov_b32 v{t2}, {OOB}\nv_cndmask_b32 v{t0}, v{t2}, v{t0}, vcc")
    a.e(f"s_lshl_b32 s53, s{S_RB}, 2\ns_add_u32 s53, s53, s{S_WAVE}\ns_lshl_b32 s53, s53, 5\ns_add_u32 s53, s53, s{S_HP}")
    a.e(f"s_lshl_b32 s54, s53, 7\ns_add_u32 s54, s54, {WS_OL}\ns_lshl_b32 s53, s53, 10\ns_add_u32 s53, s53, {WS_O}")
    OP = V.get(12, 4)
    for X, D in enumerate((T, Tx)):
        a.e(f"v_add_f32 v{D+10}, 0x358637bd, v{D+10}\nv_rcp_f32 v{D+10}, v{D+10}")
    for X, D in enumerate((T, Tx)):
        for i in range(5):
            a.e(f"v_pk_mul_f32 {vr(D+2*i,2)}, {vr(D+2*i,2)}, {vr(D+10,2)} op_sel_hi:[1,0]")
        for i in range(4):
            a.e(f"v_cvt_pk_bf16_f32 v{OP+4*X+i}, v{D+2*i}, v{D+2*i+1}")
        a.e(f"v_cvt_pk_bf16_f32 v{OP+8+X}, v{D+8}, v{D+9}")
        a.e(f"buffer_store_dwordx4 {vr(OP+4*X,4)}, v{t1}, s[{R_WS}:{R_WS+3}], s53 offen offset:{512*X}")
    a.e(f"buffer_store_dwordx2 {vr(OP+8,2)}, v{t0}, s[{R_WS}:{R_WS+3}], s54 offen")
    k.stamp(4)
    Y = V.get(20, 4)
    a.e("s_waitcnt lgkmcnt(0)")
    for ks in range(4):
        for mt in range(5):
            a.e(f"v_mfma_f32_16x16x32_bf16 {vr(Y+4*mt,4)}, {vr(GF+4*(4*mt+ks),4)}, {vr(DF+4*ks,4)}, {'0' if ks == 0 else vr(Y+4*mt,4)}")
    a.e(f"v_and_b32 v{t0}, 15, v{lane}\ns_lshl_b32 s53, s{S_WAVE}, 9\ns_add_u32 s53, s53, s{S_K1}\nv_lshl_add_u32 v{t0}, v{t0}, 5, s53")
    a.e(f"s_cmp_ge_u32 s{S_C2}, 4\ns_cselect_b32 s54, -1, 1\nv_mul_lo_u32 v{t0}, v{t0}, s54\nv_and_b32 v{t0}, 2047, v{t0}\nv_mul_u32_u24 v{t0}, 2304, v{t0}")
    a.e(f"v_lshrrev_b32 v{t2}, 4, v{lane}\nv_lshl_add_u32 v{t1}, v{t2}, 3, v{t0}\nv_lshl_add_u32 v{t0}, v{t2}, 4, v{t0}")
    a.e(f"v_cmp_gt_u32 vcc, 2, v{t2}\nv_mov_b32 v{t2}, {OOB}\nv_cndmask_b32 v{t1}, v{t2}, v{t1}, vcc")
    a.e(f"s_mul_i32 s53, s{S_C2}, 144\ns_add_u32 s53, s53, 1152")
    YP = V.get(12, 4)
    for i in range(10): a.e(f"v_cvt_pk_bf16_f32 v{YP+i}, v{Y+2*i}, v{Y+2*i+1}")
    a.e(f"buffer_store_dwordx4 {vr(YP,4)}, v{t0}, s[{R_OUT}:{R_OUT+3}], s53 offen")
    a.e(f"buffer_store_dwordx4 {vr(YP+4,4)}, v{t0}, s[{R_OUT}:{R_OUT+3}], s53 offen offset:64")
    a.e(f"buffer_store_dwordx2 {vr(YP+8,2)}, v{t1}, s[{R_OUT}:{R_OUT+3}], s53 offen offset:128")
    k.stamp(5)
    k.end(1, 256, 256)
    return 32768

def k3(a):
    k = K(a, "p3_kernel", 256)
    V = Alloc(1, 256)
    lane = V.get(); t0 = V.get(); t1 = V.get(); t2 = V.get(); t3 = V.get()
    S_RQ, S_C3 = 62, 63
    a.e(f"v_and_b32 v{lane}, 63, v0\nv_lshrrev_b32 v{t0}, 6, v0\nv_readfirstlane_b32 s{S_WAVE}, v{t0}")
    a.e(f"s_and_b32 s48, s2, 7\ns_lshl_b32 s{S_RQ}, s48, 2\ns_bfe_u32 s49, s2, 0x20003\ns_add_u32 s{S_RQ}, s{S_RQ}, s49\ns_lshr_b32 s{S_C3}, s2, 5")
    vw = [V.get() for _ in range(5)]
    for j in range(5):
        a.e(f"v_add_u32 v{t0}, {64*j}, v{lane}")
        divc(a, t1, t0, 10, 320)
        a.e(f"v_mul_u32_u24 v{t2}, 10, v{t1}\nv_sub_u32 v{t0}, v{t0}, v{t2}\nv_mul_u32_u24 v{t1}, 1152, v{t1}\nv_cmp_gt_u32 vcc, 9, v{t0}\nv_lshl_add_u32 v{t1}, v{t0}, 4, v{t1}")
        a.e(f"v_mov_b32 v{t3}, {OOB}\nv_cndmask_b32 v{vw[j]}, v{t3}, v{t1}, vcc")
    a.e("s_waitcnt lgkmcnt(0)")
    srd(a, R_WS, S_WS, WS_SIZE); srd(a, R_W, S_WO, 576*1152); srd(a, R_OUT, S_OUT, 2048*2304)
    a.e(f"s_mul_i32 s53, s{S_C3}, 144\ns_mul_i32 s54, s{S_WAVE}, {32*1152}\ns_add_u32 s53, s53, s54\ns_mul_i32 s54, s{S_WAVE}, 5120")
    k.stamp(1)
    for gi in range(5):
        for j in range(5):
            a.e(f"s_add_u32 m0, s54, {gi*20480 + j*1024}")
            a.e(f"buffer_load_dwordx4 v{vw[j]}, s[{R_W}:{R_W+3}], s53 offen lds")
        a.e(f"s_add_u32 s53, s53, {128*1152}")
    OF = V.get(72, 4)
    a.e(f"s_lshl_b32 s53, s{S_RQ}, 2\ns_add_u32 s53, s53, s{S_WAVE}\ns_lshl_b32 s54, s53, 11\ns_add_u32 s54, s54, {WS_OL}\ns_lshl_b32 s53, s53, 14\ns_add_u32 s53, s53, {WS_O}")
    a.e(f"v_lshlrev_b32 v{t0}, 4, v{lane}\nv_and_b32 v{t1}, 15, v{lane}\nv_lshrrev_b32 v{t2}, 4, v{lane}\nv_lshlrev_b32 v{t2}, 8, v{t2}\nv_lshl_add_u32 v{t1}, v{t1}, 3, v{t2}")
    for s in range(16):
        a.e(f"buffer_load_dwordx4 {vr(OF+4*s,4)}, v{t0}, s[{R_WS}:{R_WS+3}], s53 offen offset:{(s&3)*1024}")
        if s & 3 == 3: a.e("s_add_u32 s53, s53, 4096")
    for u in range(2):
        for h in range(2):
            a.e(f"buffer_load_dwordx2 {vr(OF+64+4*u+2*h,2)}, v{t1}, s[{R_WS}:{R_WS+3}], s54 offen offset:{1024*u + 128*h}")
    am, a4, lm, l4 = V.get(), V.get(), V.get(), V.get()
    a.e(f"v_lshrrev_b32 v{t0}, 5, v{lane}\nv_mul_u32_u24 v{t0}, 18, v{t0}\nv_bfe_u32 v{t1}, v{lane}, 4, 1\nv_lshl_add_u32 v{t0}, v{t1}, 3, v{t0}\nv_bfe_u32 v{t1}, v{lane}, 2, 2\nv_add_u32 v{t0}, v{t0}, v{t1}\nv_mul_u32_u24 v{t0}, 160, v{t0}")
    a.e(f"v_and_b32 v{t2}, 3, v{lane}\nv_lshl_add_u32 v{am}, v{t2}, 4, v{t0}\nv_lshl_add_u32 v{a4}, v{t2}, 3, v{t0}")
    a.e(f"v_lshrrev_b32 v{t0}, 4, v{lane}\nv_mul_u32_u24 v{t0}, 72, v{t0}\nv_bfe_u32 v{t1}, v{lane}, 3, 1\nv_mad_u32_u24 v{t0}, v{t1}, 18, v{t0}\nv_bfe_u32 v{t1}, v{lane}, 2, 1\nv_add3_u32 v{t0}, v{t0}, v{t1}, 16\nv_mul_u32_u24 v{t0}, 160, v{t0}")
    a.e(f"v_lshl_add_u32 v{lm}, v{t2}, 4, v{t0}\nv_lshl_add_u32 v{l4}, v{t2}, 3, v{t0}")
    am2, a42 = V.get(), V.get()
    a.e(f"v_add_u32 v{am2}, {8*5760}, v{am}\nv_add_u32 v{a42}, {8*5760}, v{a4}")
    a.e("s_waitcnt vmcnt(20)\ns_barrier")
    k.stamp(2)
    FW = [V.get(20, 4), V.get(20, 4)]
    Y = V.get(20, 4)
    def rd(s):
        r = []
        for mt in range(5):
            for uu in range(2):
                co = (64*(mt>>1) + 8*(mt&1)) if mt < 4 else 128
                if s < 16:
                    ad = (am if s < 8 else am2) if mt < 4 else (a4 if s < 8 else a42)
                    off = (s & 7)*5760 + uu*640 + co
                else:
                    ad = lm if mt < 4 else l4
                    off = (8*(s-16) + uu)*5760 + co
                r.append(f"ds_read_b64_tr_b16 {vr(FW[s&1]+4*mt+2*uu,2)}, v{ad} offset:{off}")
        return r
    for x in rd(0): a.e(x)
    for s in range(18):
        fill = rd(s+1) if s < 17 else []
        left = (19 - s) if s < 16 else (2 if s == 16 else 0)
        a.e(f"s_waitcnt vmcnt({left}) lgkmcnt(0)")
        for mt in range(5):
            a.e(f"v_mfma_f32_16x16x32_bf16 {vr(Y+4*mt,4)}, {vr(FW[s&1]+4*mt,4)}, {vr(OF+4*s,4)}, {'0' if s == 0 else vr(Y+4*mt,4)}")
            for x in fill[3*mt:3*mt+3]: a.e(x)
    k.stamp(3)
    a.e(f"v_and_b32 v{t0}, 15, v{lane}\nv_mul_u32_u24 v{t0}, 2304, v{t0}")
    a.e(f"v_lshrrev_b32 v{t2}, 4, v{lane}\nv_lshl_add_u32 v{t1}, v{t2}, 3, v{t0}\nv_lshl_add_u32 v{t0}, v{t2}, 4, v{t0}")
    a.e(f"v_cmp_gt_u32 vcc, 2, v{t2}\nv_mov_b32 v{t2}, {OOB}\nv_cndmask_b32 v{t1}, v{t2}, v{t1}, vcc")
    a.e(f"s_lshl_b32 s53, s{S_RQ}, 2\ns_add_u32 s53, s53, s{S_WAVE}\ns_mul_i32 s53, s53, {16*2304}\ns_mul_i32 s54, s{S_C3}, 144\ns_add_u32 s53, s53, s54")
    YP = V.get(12, 4)
    for i in range(10): a.e(f"v_cvt_pk_bf16_f32 v{YP+i}, v{Y+2*i}, v{Y+2*i+1}")
    a.e(f"buffer_store_dwordx4 {vr(YP,4)}, v{t0}, s[{R_OUT}:{R_OUT+3}], s53 offen")
    a.e(f"buffer_store_dwordx4 {vr(YP+4,4)}, v{t0}, s[{R_OUT}:{R_OUT+3}], s53 offen offset:64")
    a.e(f"buffer_store_dwordx2 {vr(YP+8,2)}, v{t1}, s[{R_OUT}:{R_OUT+3}], s53 offen offset:128")
    k.stamp(4)
    k.end(2, 256, 256)
    return 102400

def kdiag(a, spec):
    name = "diag_kernel"
    a.raw(f".globl {name}\n.p2align 8\n.type {name},@function\n{name}:")
    a.hist = []
    a.e("s_cmp_ge_u32 s2, 1\ns_cbranch_scc1 L_end_diag")
    a.e("s_load_dwordx2 s[14:15], s[0:1], 88\ns_waitcnt lgkmcnt(0)")
    kind, slot, wg, idx = spec
    a.e(f"s_add_u32 s14, s14, {WS_STAMP + slot*(1<<20) + wg*256}\ns_addc_u32 s15, s15, 0")
    a.e("s_load_dwordx16 s[16:31], s[14:15], 0\ns_memrealtime s[4:5]\ns_waitcnt lgkmcnt(0)")
    if kind == "none": a.e("s_mov_b32 s6, 0")
    elif kind == "now": a.e("s_sub_u32 s6, s4, s29")
    elif kind == "cyc": a.e(f"s_mul_i32 s6, s{16+idx}, 6554\ns_lshr_b32 s6, s6, 16")
    elif kind == "rt": a.e("s_sub_u32 s6, s28, s29")
    a.e("s_min_u32 s6, s6, 20000\ns_add_u32 s6, s6, s4")
    a.label("L_diag_spin")
    a.e("s_memrealtime s[8:9]\ns_waitcnt lgkmcnt(0)\ns_sub_u32 s10, s8, s6\ns_cmp_lt_i32 s10, 0\ns_cbranch_scc1 L_diag_spin")
    a.label("L_end_diag")
    a.e("s_endpgm")
    a.raw(f""".section .rodata,"a"
.p2align 6
.amdhsa_kernel {name}
  .amdhsa_next_free_vgpr 8
  .amdhsa_next_free_sgpr 48
  .amdhsa_accum_offset 8
  .amdhsa_group_segment_fixed_size 0
  .amdhsa_kernarg_size 96
  .amdhsa_user_sgpr_count 2
  .amdhsa_user_sgpr_kernarg_segment_ptr 1
  .amdhsa_system_sgpr_workgroup_id_x 1
.end_amdhsa_kernel
.text""")

def header(launches):
    s = open(f"cdna_kernels/{NAME}.s.ref").read().split("; Override launch")[0]
    for (k, g, b, lds) in launches:
        s += f"; @launch kernel={k} grid=({g},1,1) block=({b},1,1) lds={lds}\n"
    s += '.amdgcn_target "amdgcn-amd-amdhsa--gfx950"\n.text\n'
    return s

if __name__ == "__main__":
    STAMPS = "--stamps" in sys.argv
    a = Asm()
    l1 = k1(a, (2, 2))
    l2 = k2(a)
    l3 = k3(a)
    out = sys.argv[1]
    L = [("p1_kernel", 256, 256, l1), ("p2_kernel", 256, 256, l2), ("p3_kernel", 256, 256, l3)]
    for x in sys.argv:
        if x.startswith("--diag="):
            p = x[7:].split(",")
            kdiag(a, (p[0], int(p[1]), int(p[2]), int(p[3]))); L.append(("diag_kernel", 1, 64, 0))
    open(out, "w").write(header(L) + a.text())
    print("instrs", a.count, "nops", a.nops)
```

```python
import sys, math
from asmb import *

NAME = "concat_heads__linear_kernel_hedgehog__spectral_fnet__prompt"
WS_Q = 0
WS_PART = 4 << 20
WS_O = 8 << 20
WS_OL = WS_O + (2 << 20)
WS_G = 12 << 20
WS_SIZE = 16 << 20
WS_STAMP = 32 << 20
OOB = 0x40000000
LOG2E = 0x3fb8aa3b
STAMPS = False

S_AX, S_W, S_WPHI, S_WO, S_BX, S_WS, S_HRE, S_HIM, S_OUT, S_DBG = 4, 6, 8, 10, 12, 14, 16, 18, 20, 22
R_X, R_W, R_WS, R_P, R_OUT = 24, 28, 32, 36, 40
S_WAVE = 44
S_L = 46
S_T = 48
S_ST = 76

FUSED = False
class K:
    def __init__(self, a, name, nwg):
        self.a = a; self.name = name; self.nst = 0
        if FUSED and name != "p1_kernel":
            a.hist = []
            self.stamp()
            if STAMPS: a.e("s_memrealtime s[74:75]")
            return
        if FUSED: name = NAME + "_kernel"
        a.raw(f".globl {name}\n.p2align 8\n.type {name},@function\n{name}:")
        a.hist = []
        a.e(f"s_cmp_ge_u32 s2, {nwg}")
        a.e(f"s_cbranch_scc1 L_end_{'p3_kernel' if FUSED else name}")
        self.stamp()
        if STAMPS: a.e("s_memrealtime s[74:75]")
        a.e("s_load_dwordx8 s[4:11], s[0:1], 0")
        a.e("s_load_dwordx2 s[12:13], s[0:1], 32")
        a.e("s_load_dwordx4 s[16:19], s[0:1], 56")
        a.e("s_load_dwordx4 s[20:23], s[0:1], 72")
        a.e("s_load_dwordx2 s[14:15], s[0:1], 88")
    def stamp(self, i=None):
        if not STAMPS: return
        if i is None: i = self.nst
        self.nst = max(self.nst, i + 1)
        assert i < 12
        self.a.e(f"s_memtime s[{S_ST+2*i}:{S_ST+2*i+1}]")
    def end(self, slot, vgpr, acc):
        a = self.a
        a.label(f"L_fin_{self.name}")
        if STAMPS:
            a.e("s_waitcnt vmcnt(0) lgkmcnt(0)")
            a.e(f"s_memtime s[{S_ST+22}:{S_ST+23}]")
            a.e(f"s_memrealtime s[{S_ST+24}:{S_ST+25}]")
            a.e("s_waitcnt lgkmcnt(0)")
            a.e("s_mov_b64 exec, 1")
            a.e(f"s_lshl_b32 s48, s2, 2\ns_add_u32 s48, s48, s{S_WAVE}\ns_lshl_b32 s48, s48, 6\ns_add_u32 s48, s48, {WS_STAMP + slot*(1<<20)}")
            a.e("v_mov_b32 v1, s48")
            for i in range(13):
                if i < 12 and i > 0: a.e(f"s_sub_u32 s{S_ST+2*i}, s{S_ST+2*i}, s{S_ST}")
                a.e(f"v_mov_b32 v2, s{S_ST+2*i}")
                a.e(f"global_store_dword v1, v2, s[{S_WS}:{S_WS+1}] offset:{4*i}")
            a.e(f"v_mov_b32 v2, s74\nglobal_store_dword v1, v2, s[{S_WS}:{S_WS+1}] offset:52")
            a.e("s_waitcnt vmcnt(0)")
        if FUSED and slot < 2:
            a.e("s_mov_b64 exec, -1")
            a.e("s_waitcnt vmcnt(0) lgkmcnt(0)\ns_barrier")
            a.e(f"s_cmp_lg_u32 s{S_WAVE}, 0\ns_cbranch_scc1 L_gb_done{slot}")
            a.e("buffer_wbl2 sc1\ns_waitcnt vmcnt(0)")
            a.e(f"v_mov_b32 v1, {128*slot}\nv_mov_b32 v2, 1\ns_mov_b64 exec, 1")
            a.e(f"global_atomic_add v1, v2, s[{S_DBG}:{S_DBG+1}] sc1")
            a.e("s_mov_b32 s48, 0")
            a.label(f"L_gb_poll{slot}")
            a.e(f"global_load_dword v2, v1, s[{S_DBG}:{S_DBG+1}] sc1\ns_add_u32 s48, s48, 1\ns_waitcnt vmcnt(0)")
            a.e("v_readfirstlane_b32 s49, v2\ns_cmp_gt_u32 s48, 200000")
            a.e(f"s_cbranch_scc1 L_gb_out{slot}\ns_sleep 2\ns_cmp_lt_u32 s49, 256\ns_cbranch_scc1 L_gb_poll{slot}")
            a.label(f"L_gb_out{slot}")
            a.e("s_mov_b64 exec, -1\nbuffer_inv sc1\ns_waitcnt vmcnt(0)")
            a.label(f"L_gb_done{slot}")
            a.e("s_barrier")
            return
        a.label(f"L_end_{self.name}")
        a.e("s_endpgm")
        if FUSED: self.name = NAME + "_kernel"
        a.raw(f""".section .rodata,"a"
.p2align 6
.amdhsa_kernel {self.name}
  .amdhsa_next_free_vgpr {vgpr}
  .amdhsa_next_free_sgpr 102
  .amdhsa_accum_offset {acc}
  .amdhsa_group_segment_fixed_size 0
  .amdhsa_kernarg_size 96
  .amdhsa_user_sgpr_count 2
  .amdhsa_user_sgpr_kernarg_segment_ptr 1
  .amdhsa_system_sgpr_workgroup_id_x 1
.end_amdhsa_kernel
.text""")

def srd(a, d, base, nbytes):
    a.e(f"s_mov_b32 s{d}, s{base}\ns_and_b32 s{d+1}, s{base+1}, 0xffff\ns_mov_b32 s{d+2}, {nbytes}\ns_mov_b32 s{d+3}, 0x20000")

def divc(a, dst, src, c, maxv):
    for sh in range(8, 24):
        m = (1 << sh) // c + 1
        if m < (1 << 24) and m * maxv < (1 << 32) and all((x * m) >> sh == x // c for x in range(maxv + 1)):
            a.e(f"v_mul_u32_u24 v{dst}, {m}, v{src}\nv_lshrrev_b32 v{dst}, {sh}, v{dst}")
            return
    raise RuntimeError("no magic")

def interleave(a, main, fill, start=0, per=None):
    fill = list(fill)
    n = len(main)
    if per is None: per = max(1, -(-len(fill) // max(1, n - start)))
    for i, m in enumerate(main):
        a.e(m)
        if i >= start:
            for _ in range(per):
                if fill: a.e(fill.pop(0))
    for f in fill: a.e(f)

def wphi_dma(a, V, lane, nheads, s_head0, lds_base):
    tot = nheads * 240
    n = -(-tot // 256)
    t0, t1, t2, t3 = V.get(), V.get(), V.get(), V.get()
    a.e(f"s_mul_i32 s{S_T}, s{s_head0}, 648")
    for i in range(n):
        a.e(f"s_lshl_b32 s{S_T+1}, s{S_WAVE}, 6\ns_add_u32 s{S_T+1}, s{S_T+1}, {i*256}")
        a.e(f"v_add_u32 v{t0}, s{S_T+1}, v{lane}")
        divc(a, t1, t0, 10, 1024)
        a.e(f"v_mul_u32_u24 v{t2}, 10, v{t1}\nv_sub_u32 v{t0}, v{t0}, v{t2}")
        divc(a, t2, t1, 24, 103)
        a.e(f"v_mul_u32_u24 v{t3}, 24, v{t2}\nv_sub_u32 v{t1}, v{t1}, v{t3}")
        a.e(f"v_mul_u32_u24 v{t2}, 648, v{t2}\nv_mad_u32_u24 v{t2}, v{t1}, 36, v{t2}\nv_lshl_add_u32 v{t2}, v{t0}, 2, v{t2}")
        a.e(f"v_cmp_gt_u32 vcc, 18, v{t1}\nv_cmp_gt_u32 s[{S_T+2}:{S_T+3}], 9, v{t0}")
        a.e(f"s_and_b64 vcc, vcc, s[{S_T+2}:{S_T+3}]")
        a.e(f"v_mov_b32 v{t3}, {OOB}\nv_cndmask_b32 v{t2}, v{t3}, v{t2}, vcc")
        a.e(f"s_lshl_b32 s{S_T+1}, s{S_WAVE}, 8\ns_add_u32 m0, s{S_T+1}, {lds_base + i*1024}")
        a.e(f"buffer_load_dword v{t2}, s[{R_P}:{R_P+3}], s{S_T} offen lds")
    for t in (t0, t1, t2, t3): V.put(t)
    return n

def wphi_frags(a, V, lane, nx, hstride, lds_base):
    am, ax, t = V.get(), V.get(), V.get()
    a.e(f"v_and_b32 v{t}, 1, v{lane}\nv_mul_u32_u24 v{ax}, {960*hstride}, v{t}")
    a.e(f"v_bfe_u32 v{t}, v{lane}, 2, 2\nv_mad_u32_u24 v{ax}, v{t}, 40, v{ax}")
    a.e(f"v_add_u32 v{ax}, {lds_base}, v{ax}")
    a.e(f"v_bfe_u32 v{t}, v{lane}, 4, 1\nv_lshl_add_u32 v{am}, v{t}, 4, v{ax}")
    a.e(f"v_bfe_u32 v{t}, v{lane}, 1, 1\nv_lshl_add_u32 v{am}, v{t}, 3, v{am}")
    F = [[[V.get(4) for w in range(3)] for T in range(2)] for X in range(nx)]
    cnt = 0
    for X in range(nx):
        for T in range(2):
            for w in range(3):
                for u in range(2):
                    off = X*960 + (8*w + 4*u)*40 + (32 if T else 0)
                    a.e(f"ds_read_b64_tr_b16 {vr(F[X][T][w]+2*u,2)}, v{ax if T else am} offset:{off}")
                    cnt += 1
                    if cnt % 12 == 0: a.e("s_waitcnt lgkmcnt(0)")
    a.e(f"v_bfe_u32 v{t}, v{lane}, 2, 1\nv_lshrrev_b32 v{am}, 5, v{lane}\nv_cmp_eq_u32 vcc, v{t}, v{am}")
    a.e("s_waitcnt lgkmcnt(0)")
    for X in range(nx):
        for T in range(2):
            for w in range(3):
                for i in range(4):
                    r = F[X][T][w] + i
                    a.e(f"v_cndmask_b32 v{r}, 0, v{r}, vcc")
    for x in (am, ax, t): V.put(x)
    return F

def softmax2(a, V, T, Tx, outp, outn):
    p = [T + i for i in range(16)] + [Tx, Tx + 1]
    c = V.get(2); E = V.get(18, 2); N = V.get(18, 2); S = V.get(4, 2)
    mx, mn = c, c + 1
    a.e(f"v_max3_f32 v{mx}, v{p[0]}, v{p[1]}, v{p[2]}")
    a.e(f"v_min3_f32 v{mn}, v{p[0]}, v{p[1]}, v{p[2]}")
    for i in range(3, 17, 2):
        a.e(f"v_max3_f32 v{mx}, v{mx}, v{p[i]}, v{p[i+1]}")
        a.e(f"v_min3_f32 v{mn}, v{mn}, v{p[i]}, v{p[i+1]}")
    a.e(f"v_max_f32 v{mx}, v{mx}, v{p[17]}")
    a.e(f"v_min_f32 v{mn}, v{mn}, v{p[17]}")
    a.e(f"v_pk_mul_f32 {vr(c,2)}, {vr(c,2)}, s[{S_L}:{S_L+1}] neg_lo:[1,0]")
    for i in range(9):
        a.e(f"v_pk_fma_f32 {vr(E+2*i,2)}, {vr(p[2*i],2)}, s[{S_L}:{S_L+1}], {vr(c,2)} op_sel_hi:[1,1,0]")
        a.e(f"v_pk_fma_f32 {vr(N+2*i,2)}, {vr(p[2*i],2)}, s[{S_L}:{S_L+1}], {vr(c,2)} op_sel:[0,0,1] neg_lo:[1,0,0] neg_hi:[1,0,0]")
    for i in range(18):
        a.e(f"v_exp_f32 v{E+i}, v{E+i}")
        a.e(f"v_exp_f32 v{N+i}, v{N+i}")
    a.e(f"v_pk_add_f32 {vr(S,2)}, {vr(E,2)}, {vr(E+2,2)}")
    a.e(f"v_pk_add_f32 {vr(S+2,2)}, {vr(N,2)}, {vr(N+2,2)}")
    for i in range(2, 9):
        a.e(f"v_pk_add_f32 {vr(S,2)}, {vr(S,2)}, {vr(E+2*i,2)}")
        a.e(f"v_pk_add_f32 {vr(S+2,2)}, {vr(S+2,2)}, {vr(N+2*i,2)}")
    a.e(f"v_add_f32 v{S}, v{S}, v{S+1}")
    a.e(f"v_add_f32 v{S+1}, v{S+2}, v{S+3}")
    a.e(f"v_rcp_f32 v{S}, v{S}")
    a.e(f"v_rcp_f32 v{S+1}, v{S+1}")
    for i in range(9):
        a.e(f"v_pk_mul_f32 {vr(E+2*i,2)}, {vr(E+2*i,2)}, {vr(S,2)} op_sel_hi:[1,0]")
        a.e(f"v_pk_mul_f32 {vr(N+2*i,2)}, {vr(N+2*i,2)}, {vr(S,2)} op_sel:[0,1]")
    for i in range(9):
        a.e(f"v_cvt_pk_bf16_f32 v{outp+i}, v{E+2*i}, v{E+2*i+1}")
        a.e(f"v_cvt_pk_bf16_f32 v{outn+i}, v{N+2*i}, v{N+2*i+1}")
    V.put(c, 2); V.put(E, 18); V.put(N, 18); V.put(S, 4)

NS = 4
SLOT = 36864
LDS_MISC = NS * SLOT
S_XB, S_WB, S_WSTEP, S_CI, S_XC, S_WC = 56, 57, 58, 59, 60, 61
S_RB, S_CB, S_ROLE = 62, 63, 64

def dma_chunk(c, vx, vw, xstep):
    base = (c % NS) * SLOT
    g = []
    pre = f"s_lshl_b32 s{S_XC}, s{S_CI}, 7\ns_add_u32 s{S_XC}, s{S_XC}, s{S_XB}\ns_mul_i32 s{S_WC}, s{S_CI}, s{S_WSTEP}\ns_add_u32 s{S_WC}, s{S_WC}, s{S_WB}\n"
    pre += f"s_add_u32 s{S_CI}, s{S_CI}, 1\ns_cmp_eq_u32 s{S_CI}, 9\ns_cselect_b32 s{S_CI}, 0, s{S_CI}\n"
    for i in range(4):
        t = pre if i == 0 else f"s_add_u32 s{S_XC}, s{S_XC}, {xstep}\n"
        t += f"s_add_u32 m0, s65, {base + i*1024}\n"
        t += f"buffer_load_dwordx4 v{vx[i&1]}, s[{R_X}:{R_X+3}], s{S_XC} offen lds"
        g.append(t)
    for j in range(5):
        g.append(f"s_add_u32 m0, s66, {base + 16384 + j*1024}\nbuffer_load_dwordx4 v{vw[j]}, s[{R_W}:{R_W+3}], s{S_WC} offen lds")
    return g

def k1(a, rot):
    k = K(a, "p1_kernel", 256)
    V = Alloc(1, 256)
    lane = V.get(); t0 = V.get(); t1 = V.get(); t2 = V.get(); t3 = V.get()
    a.e(f"v_and_b32 v{lane}, 63, v0\nv_lshrrev_b32 v{t0}, 6, v0\nv_readfirstlane_b32 s{S_WAVE}, v{t0}")
    a.e("s_and_b32 s48, s2, 7\ns_lshr_b32 s49, s2, 3")
    a.e(f"s_and_b32 s{S_RB}, s48, 3\ns_lshl_b32 s{S_RB}, s{S_RB}, 2\ns_and_b32 s50, s49, 3\ns_add_u32 s{S_RB}, s{S_RB}, s50")
    a.e("s_lshr_b32 s51, s48, 2\ns_lshr_b32 s52, s49, 2")
    if rot:
        a.e(f"s_mul_i32 s{S_CI}, s50, {rot[0]}\ns_mul_i32 s53, s52, {rot[1]}\ns_add_u32 s{S_CI}, s{S_CI}, s53")
        a.e(f"s_mul_i32 s53, s{S_CI}, 7282\ns_lshr_b32 s53, s53, 16\ns_mul_i32 s53, s53, 9\ns_sub_u32 s{S_CI}, s{S_CI}, s53")
    else:
        a.e(f"s_mov_b32 s{S_CI}, 0")
    a.e(f"s_lshl_b32 s65, s{S_WAVE}, 12\ns_mul_i32 s66, s{S_WAVE}, 5120")
    a.e(f"s_mov_b32 s{S_L}, {LOG2E}\ns_mov_b32 s{S_L+1}, {LOG2E}")
    vx = [V.get(), V.get()]; vw = [V.get() for _ in range(5)]
    swz = V.get()
    a.e(f"v_and_b32 v{t0}, 7, v{lane}\nv_lshrrev_b32 v{t1}, 4, v{lane}\nv_xor_b32 v{t0}, v{t0}, v{t1}\nv_lshlrev_b32 v{swz}, 4, v{t0}")
    a.e(f"v_lshrrev_b32 v{t3}, 3, v{lane}")
    a.e("s_cmp_ge_u32 s49, 24\ns_cbranch_scc1 L_b1")
    a.e(f"v_mul_u32_u24 v{t0}, 1152, v{t3}\nv_add_u32 v{vx[0]}, v{t0}, v{swz}\nv_xor_b32 v{vx[1]}, 64, v{vx[0]}")
    a.e(f"s_lshl_b32 s53, s{S_RB}, 2\ns_add_u32 s53, s53, s{S_WAVE}\ns_mul_i32 s{S_XB}, s53, 36864")
    a.e(f"s_mov_b32 s{S_WSTEP}, {64*3456}")
    a.e(f"s_cmp_ge_u32 s49, 16\ns_cselect_b32 s{S_ROLE}, 1, 0\ns_cbranch_scc1 L_qsetup")
    a.e(f"s_lshl_b32 s{S_CB}, s51, 2\ns_add_u32 s{S_CB}, s{S_CB}, s52\ns_mul_i32 s{S_WB}, s{S_CB}, 144")
    for j in range(5):
        a.e(f"s_mul_i32 s53, s{S_WAVE}, 320\ns_add_u32 s53, s53, {j*64}\nv_add_u32 v{t0}, s53, v{lane}")
        divc(a, t1, t0, 20, 1280)
        a.e(f"v_mul_u32_u24 v{t2}, 20, v{t1}\nv_sub_u32 v{t0}, v{t0}, v{t2}")
        a.e(f"v_mul_u32_u24 v{t1}, 3456, v{t1}")
        divc(a, t2, t0, 5, 20)
        a.e(f"v_mul_u32_u24 v{t3}, 5, v{t2}\nv_sub_u32 v{t0}, v{t0}, v{t3}")
        a.e(f"v_lshlrev_b32 v{t0}, 4, v{t0}\nv_min_u32 v{t0}, 56, v{t0}\nv_add_u32 v{t1}, v{t1}, v{t0}")
        a.e(f"v_and_b32 v{t0}, 1, v{t2}\nv_mul_u32_u24 v{t0}, 1152, v{t0}\nv_lshrrev_b32 v{t2}, 1, v{t2}\nv_mul_u32_u24 v{t2}, 72, v{t2}")
        a.e(f"v_add3_u32 v{vw[j]}, v{t1}, v{t0}, v{t2}\nv_add_u32 v{vw[j]}, 1152, v{vw[j]}")
    a.e("s_branch L_ago")
    a.label("L_qsetup")
    a.e(f"s_lshl_b32 s{S_CB}, s51, 1\ns_and_b32 s53, s52, 1\ns_add_u32 s{S_CB}, s{S_CB}, s53\ns_mul_i32 s{S_WB}, s{S_CB}, 288")
    for j in range(5):
        a.e(f"s_mul_i32 s53, s{S_WAVE}, 320\ns_add_u32 s53, s53, {j*64}\nv_add_u32 v{t0}, s53, v{lane}")
        divc(a, t1, t0, 10, 1280)
        a.e(f"v_mul_u32_u24 v{t2}, 10, v{t1}\nv_sub_u32 v{t0}, v{t0}, v{t2}")
        a.e(f"v_and_b32 v{t2}, 1, v{t1}\nv_lshrrev_b32 v{t1}, 1, v{t1}\nv_mul_u32_u24 v{t1}, 3456, v{t1}\nv_mul_u32_u24 v{t2}, 144, v{t2}")
        a.e(f"v_cmp_gt_u32 vcc, 9, v{t0}\nv_lshlrev_b32 v{t0}, 4, v{t0}\nv_add3_u32 v{t1}, v{t1}, v{t0}, v{t2}")
        a.e(f"v_mov_b32 v{t3}, {OOB}\nv_cndmask_b32 v{vw[j]}, v{t3}, v{t1}, vcc")
    a.label("L_ago")
    a.e("s_waitcnt lgkmcnt(0)")
    srd(a, R_X, S_AX, 2048*1152); srd(a, R_W, S_W, 576*3456); srd(a, R_WS, S_WS, WS_SIZE); srd(a, R_P, S_WPHI, 32*648)
    k.stamp(1)
    for c in range(NS - 1):
        for g in dma_chunk(c, vx, vw, 9216): a.e(g)
    a.e(f"s_lshl_b32 s67, s{S_CB}, 2")
    nwp = wphi_dma(a, V, lane, 4, 67, LDS_MISC)
    xa = [V.get() for _ in range(4)]; wa = V.get()
    xs = [V.get() for _ in range(4)]; ws_ = V.get()
    a.e(f"v_and_b32 v{t0}, 31, v{lane}\nv_lshrrev_b32 v{t1}, 5, v{lane}\nv_bfe_u32 v{t2}, v{lane}, 1, 3\nv_xor_b32 v{t1}, v{t1}, v{t2}")
    a.e(f"v_lshlrev_b32 v{t0}, 7, v{t0}\nv_lshl_add_u32 v{t0}, v{t1}, 4, v{t0}\nv_add_u32 v{xa[0]}, s65, v{t0}")
    for ks in range(1, 4): a.e(f"v_xor_b32 v{xa[ks]}, {32*ks}, v{xa[0]}")
    a.e(f"v_lshrrev_b32 v{t0}, 5, v{lane}\nv_bfe_u32 v{t1}, v{lane}, 2, 2\nv_lshl_add_u32 v{t0}, v{t0}, 3, v{t1}\nv_mul_u32_u24 v{t0}, 320, v{t0}")
    a.e(f"v_and_b32 v{t1}, 1, v{lane}\nv_mul_u32_u24 v{t1}, 160, v{t1}\nv_bfe_u32 v{t2}, v{lane}, 4, 1\nv_lshl_add_u32 v{t1}, v{t2}, 4, v{t1}")
    a.e(f"v_bfe_u32 v{t2}, v{lane}, 1, 1\nv_lshl_add_u32 v{t1}, v{t2}, 3, v{t1}\nv_add3_u32 v{wa}, v{t0}, v{t1}, 0\nv_add_u32 v{wa}, 16384, v{wa}")
    acc = V.get(80, 4)
    FX = [V.get(4), V.get(4)]; FW = [V.get(20, 4), V.get(20, 4)]
    def reads(s):
        c, ks = divmod(s, 4); b = s & 1
        r = []
        if ks == 0:
            base = (c % NS) * SLOT
            pre = "\n".join(f"v_add_u32 v{xs[i]}, {base}, v{xa[i]}" for i in range(4)) + f"\nv_add_u32 v{ws_}, {base}, v{wa}\n"
        else: pre = ""
        r.append(pre + f"ds_read_b128 {vr(FX[b],4)}, v{xs[ks]}")
        for t in range(5):
            for u in range(2):
                r.append(f"ds_read_b64_tr_b16 {vr(FW[b]+4*t+2*u,2)}, v{ws_} offset:{(16*ks+4*u)*320 + 32*t}")
        return r
    q = []
    for c in range(NS - 1): q += [("c", c)] * 9
    q += [("p", 0)] * nwp
    def wait_chunk(c, also_p=False):
        last = max(i for i, x in enumerate(q) if x == ("c", c) or (also_p and x[0] == "p"))
        a.e(f"s_waitcnt vmcnt({len(q) - 1 - last})")
    wait_chunk(0); a.e("s_barrier")
    k.stamp(2)
    for r in reads(0): a.e(r)
    pend = []
    for s in range(36):
        c, ks = divmod(s, 4); b = s & 1
        fill = []
        if s + 1 < 36:
            if ks == 3:
                wait_chunk(c + 1, also_p=(c + 1 == NS - 1)); a.e("s_barrier")
                nc = c - 1 + NS
                if c == 0: nc = NS - 1
                elif True: nc = c - 1 + NS
                if nc < 9 and not any(x == ("c", nc) for x in q) :
                    pend = dma_chunk(nc, vx, vw, 9216); q += [("c", nc)] * 9
            fill = reads(s + 1)
        a.e("s_waitcnt lgkmcnt(0)")
        mf = [f"v_mfma_f32_32x32x16_bf16 {vr(acc+16*t,16)}, {vr(FW[b]+4*t,4)}, {vr(FX[b],4)}, {'0' if s == 0 else vr(acc+16*t,16)}" for t in range(5)]
        seq = []
        for t in range(5):
            seq.append(mf[t])
            if t < 3: seq += fill[4*t:4*t+4]
            else:
                for _ in range(2 if t == 3 else 1):
                    if pend: seq.append(pend.pop(0))
        for x in seq: a.e(x)
        if ks == 2:
            while pend: a.e(pend.pop(0))
    k.stamp(3)
    for x in FX: V.put(x, 4)
    for x in FW: V.put(x, 20)
    for x in xa + xs + [wa, ws_]: V.put(x)
    a.e(f"s_cmp_eq_u32 s{S_ROLE}, 1\ns_cbranch_scc1 L_qepi")
    hist_save = list(a.hist)
    import copy
    V2 = copy.deepcopy(V)
    F = wphi_frags(a, V, lane, 2, 2, LDS_MISC)
    pos = lambda kk: kk if kk < 32 else kk + 4
    P = V.get(22, 2)
    PH = V.get(56, 4)
    for X in range(2):
        for i in range(9):
            a.e(f"v_cvt_pk_bf16_f32 v{P+10*X+i}, v{acc+pos(18*X+2*i)}, v{acc+pos(18*X+2*i+1)}")
    for r in (9, 19, 20, 21): a.e(f"v_mov_b32 v{P+r}, 0")
    for X in range(2):
        for i in range(9):
            a.e(f"v_cvt_pk_bf16_f32 v{PH+36+10*X+i}, v{acc+40+pos(18*X+2*i)}, v{acc+40+pos(18*X+2*i+1)}")
        a.e(f"v_mov_b32 v{PH+36+10*X+9}, 0x3f80")
    V.put(acc, 80)
    T = [V.get(16, 4), V.get(16, 4)]; Tx = [V.get(16, 4), V.get(16, 4)]
    for X in range(2):
        for (D, tt) in ((T[X], 0), (Tx[X], 1)):
            for w in range(3):
                a.e(f"v_mfma_f32_32x32x16_bf16 {vr(D,16)}, {vr(F[X][tt][w],4)}, {vr(P+10*X+4*w,4)}, {'0' if w == 0 else vr(D,16)}")
    for X in range(2):
        for tt in range(2):
            for w in range(3): V.put(F[X][tt][w], 4)
    V.put(P, 22)
    k.stamp(4)
    for X in range(2):
        softmax2(a, V, T[X], Tx[X], PH + 18*X, PH + 18*X + 9)
    k.stamp(5)
    for X in range(2): V.put(T[X], 16); V.put(Tx[X], 16)
    a.e(f"v_and_b32 v{t0}, 31, v{lane}\ns_lshl_b32 s53, s{S_WAVE}, 5\nv_add_u32 v{t0}, s53, v{t0}\nv_mul_u32_u24 v{t0}, 464, v{t0}")
    a.e(f"v_lshrrev_b32 v{t1}, 5, v{lane}\nv_mul_u32_u24 v{t1}, 224, v{t1}\nv_add_u32 v{t0}, v{t0}, v{t1}")
    a.e("s_barrier")
    for i in range(14):
        a.e(f"ds_write_b128 v{t0}, {vr(PH+4*i,4)} offset:{16*i}")
    a.e(f"v_bfe_u32 v{t1}, v{lane}, 2, 3\nv_lshrrev_b32 v{t2}, 5, v{lane}\nv_lshl_add_u32 v{t1}, v{t2}, 3, v{t1}\nv_mul_u32_u24 v{t1}, 928, v{t1}")
    a.e(f"v_and_b32 v{t2}, 3, v{lane}\nv_lshl_add_u32 v{t1}, v{t2}, 3, v{t1}")
    a.e(f"s_lshr_b32 s53, s{S_WAVE}, 1\ns_mul_i32 s53, s53, 224\ns_and_b32 s54, s{S_WAVE}, 1\ns_mul_i32 s55, s54, 72\ns_add_u32 s55, s55, s53")
    a.e(f"s_mul_i32 s54, s54, 40\ns_add_u32 s54, s54, s53\ns_add_u32 s54, s54, 144")
    a.e(f"v_add_u32 v{t2}, s54, v{t1}\nv_add_u32 v{t1}, s55, v{t1}")
    a.e("s_waitcnt lgkmcnt(0)\ns_barrier")
    FA = [V.get(12, 4) for _ in range(4)]; FB = [V.get(8, 4) for _ in range(4)]
    KV = V.get(24, 4)
    for ks in range(4):
        for t in range(3):
            for u in range(2):
                a.e(f"ds_read_b64_tr_b16 {vr(FA[ks]+4*t+2*u,2)}, v{t1} offset:{(32*ks+u)*464 + 32*t}")
        for t in range(2):
            for u in range(2):
                a.e(f"ds_read_b64_tr_b16 {vr(FB[ks]+4*t+2*u,2)}, v{t2} offset:{(32*ks+u)*464 + 32*t}")
        if ks >= 1:
            a.e("s_waitcnt lgkmcnt(10)")
            for t in range(3):
                for u in range(2):
                    D = KV + 4*(2*t+u)
                    a.e(f"v_mfma_f32_16x16x32_bf16 {vr(D,4)}, {vr(FA[ks-1]+4*t,4)}, {vr(FB[ks-1]+4*u,4)}, {'0' if ks == 1 else vr(D,4)}")
    a.e("s_waitcnt lgkmcnt(0)")
    for t in range(3):
        for u in range(2):
            D = KV + 4*(2*t+u)
            a.e(f"v_mfma_f32_16x16x32_bf16 {vr(D,4)}, {vr(FA[3]+4*t,4)}, {vr(FB[3]+4*u,4)}, {vr(D,4)}")
    o = [V.get() for _ in range(4)]
    a.e(f"v_and_b32 v{t0}, 15, v{lane}\nv_lshrrev_b32 v{t1}, 4, v{lane}\nv_mul_u32_u24 v{t2}, 320, v{t1}\nv_lshl_add_u32 v{o[0]}, v{t0}, 4, v{t2}")
    a.e(f"v_mov_b32 v{t3}, {OOB}\nv_cmp_gt_u32 vcc, 4, v{t0}\nv_cndmask_b32 v{o[1]}, v{t3}, v{o[0]}, vcc")
    a.e(f"v_cmp_eq_u32 vcc, 0, v{t1}\nv_cndmask_b32 v{o[2]}, v{t3}, v{o[0]}, vcc\nv_cndmask_b32 v{o[3]}, v{t3}, v{o[1]}, vcc")
    a.e(f"s_lshl_b32 s53, s{S_CB}, 1\ns_lshr_b32 s54, s{S_WAVE}, 1\ns_add_u32 s53, s53, s54\ns_lshl_b32 s53, s53, 4\ns_add_u32 s53, s53, s{S_RB}\ns_mul_i32 s53, s53, 5760")
    a.e(f"s_and_b32 s54, s{S_WAVE}, 1\ns_mul_i32 s54, s54, 2880\ns_add_u32 s53, s53, s54\ns_add_u32 s53, s53, {WS_PART}")
    for t in range(3):
        for u in range(2):
            D = KV + 4*(2*t+u)
            a.e(f"buffer_store_dwordx4 {vr(D,4)}, v{o[(2 if t == 2 else 0)+u]}, s[{R_WS}:{R_WS+3}], s53 offen offset:{t*1280 + u*256}")
    k.stamp(6)
    a.e(f"s_branch L_fin_{k.name}")
    vmax = V.max
    V = V2
    a.label("L_qepi"); a.hist = hist_save
    Q = V.get(40, 2)
    for X in range(4):
        for i in range(9):
            a.e(f"v_cvt_pk_bf16_f32 v{Q+10*X+i}, v{acc+18*X+2*i}, v{acc+18*X+2*i+1}")
    a.e(f"v_and_b32 v{t0}, 31, v{lane}\nv_lshrrev_b32 v{t1}, 5, v{lane}\nv_mul_u32_u24 v{t1}, 18432, v{t1}")
    a.e(f"v_lshl_add_u32 v{t2}, v{t0}, 4, v{t1}\nv_lshl_add_u32 v{t3}, v{t0}, 2, v{t1}")
    a.e(f"s_lshl_b32 s53, s{S_RB}, 4\ns_lshl_b32 s54, s{S_CB}, 2\ns_add_u32 s53, s53, s54\ns_lshl_b32 s53, s53, 2\ns_add_u32 s53, s53, s{S_WAVE}\ns_mul_i32 s53, s53, 2304")
    a.e(f"s_add_u32 s53, s53, {WS_Q}\ns_add_u32 s54, s53, 9216")
    for X in range(4):
        so = 53 + (X >> 1)
        for p in range(2):
            a.e(f"buffer_store_dwordx4 {vr(Q+10*X+4*p,4)}, v{t2}, s[{R_WS}:{R_WS+3}], s{so} offen offset:{(X&1)*512 + p*1024}")
        a.e(f"buffer_store_dword v{Q+10*X+8}, v{t3}, s[{R_WS}:{R_WS+3}], s{so} offen offset:{2048 + (X&1)*128}")
    k.stamp(6)
    a.e(f"s_branch L_fin_{k.name}")
    V = Alloc(1, 256)
    for r in [lane, t0, t1, t2, t3] + vx + vw + [swz]: V.free[r] = False
    a.label("L_b1"); a.hist = []
    a.e(f"v_mul_u32_u24 v{t0}, 73728, v{t3}\nv_add_u32 v{vx[0]}, v{t0}, v{swz}\nv_xor_b32 v{vx[1]}, 64, v{vx[0]}")
    a.e(f"s_lshl_b32 s67, s{S_RB}, 2\ns_add_u32 s67, s67, s{S_WAVE}\ns_mul_i32 s{S_XB}, s67, 1152")
    a.e(f"s_mov_b32 s{S_WSTEP}, 128")
    a.e(f"s_lshl_b32 s{S_CB}, s51, 1\ns_and_b32 s53, s52, 1\ns_add_u32 s{S_CB}, s{S_CB}, s53")
    a.e(f"s_and_b32 s53, s{S_WAVE}, 1\ns_mul_i32 s54, s53, 40\ns_mul_i32 s{S_WB}, s{S_CB}, 80\ns_add_u32 s{S_WB}, s{S_WB}, s54\ns_mul_i32 s{S_WB}, s{S_WB}, 1152")
    a.e(f"s_lshl_b32 s53, s53, 6")
    a.e(f"v_mul_u32_u24 v{t0}, 1152, v{t3}\nv_add_u32 v{t0}, v{t0}, v{swz}\nv_xor_b32 v{vw[0]}, s53, v{t0}")
    for j in range(1, 5):
        a.e(f"v_xor_b32 v{vw[j]}, 64, v{vw[j-1]}\nv_add_u32 v{vw[j]}, 9216, v{vw[j]}")
    a.e("s_waitcnt lgkmcnt(0)")
    srd(a, R_X, S_BX, 2048*1152); srd(a, R_WS, S_WS, WS_SIZE)
    a.e(f"s_cmp_ge_u32 s{S_WAVE}, 2\ns_cselect_b32 s54, s{S_HIM}, s{S_HRE}\ns_cselect_b32 s55, s{S_HIM+1}, s{S_HRE+1}")
    srd(a, R_W, 54, 289*1152)
    k.stamp(1)
    for c in range(NS - 1):
        for g in dma_chunk(c, vx, vw, 8*73728): a.e(g)
    la = [V.get(), V.get()]; xs = [V.get(), V.get()]; wsr = [V.get(), V.get()]
    a.e(f"v_and_b32 v{t0}, 15, v{lane}\nv_lshrrev_b32 v{t1}, 4, v{lane}\nv_bfe_u32 v{t2}, v{lane}, 1, 3\nv_xor_b32 v{t1}, v{t1}, v{t2}")
    a.e(f"v_lshlrev_b32 v{t0}, 7, v{t0}\nv_lshl_add_u32 v{la[0]}, v{t1}, 4, v{t0}\nv_xor_b32 v{la[1]}, 64, v{la[0]}")
    TC = [V.get(4), V.get(4)]; TS = [V.get(4), V.get(4)]; TN = [V.get(4), V.get(4)]
    e0, e1, e2, e3 = V.get(), V.get(), V.get(), V.get()
    a.e(f"v_and_b32 v{t0}, 15, v{lane}\nv_lshrrev_b32 v{t1}, 4, v{lane}\nv_lshlrev_b32 v{t1}, 8, v{t1}\nv_add_u32 v{t1}, s67, v{t1}")
    for kt in range(2):
        if kt: a.e(f"v_add_u32 v{t0}, 16, v{t0}")
        for jp in range(4):
            for h, (ec, es) in enumerate(((e0, e1), (e2, e3))):
                j = 2*jp + h
                s1off = 64*(16*(j//4) + j % 4)
                a.e(f"v_add_u32 v{t2}, {s1off}, v{t1}\nv_mul_u32_u24 v{t2}, v{t2}, v{t0}\nv_and_b32 v{t2}, 2047, v{t2}\nv_cvt_f32_u32 v{t2}, v{t2}\nv_mul_f32 v{t2}, 0x3a000000, v{t2}")
                a.e(f"v_cos_f32 v{ec}, v{t2}\nv_sin_f32 v{es}, v{t2}")
            a.e(f"v_cvt_pk_bf16_f32 v{TC[kt]+jp}, v{e0}, v{e2}\nv_cvt_pk_bf16_f32 v{TS[kt]+jp}, v{e1}, v{e3}")
            a.e(f"v_xor_b32 v{TN[kt]+jp}, 0x80008000, v{TS[kt]+jp}")
    acc = V.get(80, 4)
    FX = [V.get(8, 4), V.get(8, 4)]; FW = [V.get(40, 4), V.get(40, 4)]
    def breads(s):
        c, ks = divmod(s, 2); b = s & 1
        r = []
        pre = ""
        if ks == 0:
            base = (c % NS) * SLOT
            pre = f"s_add_u32 s53, s65, {base}\n" + "\n".join(f"v_add_u32 v{xs[i]}, s53, v{la[i]}\nv_add_u32 v{wsr[i]}, {base+16384}, v{la[i]}" for i in range(2)) + "\n"
        for rt in range(2):
            r.append((pre if rt == 0 else "") + f"ds_read_b128 {vr(FX[b]+4*rt,4)}, v{xs[ks]} offset:{2048*rt}")
        for ct in range(10):
            r.append(f"ds_read_b128 {vr(FW[b]+4*ct,4)}, v{wsr[ks]} offset:{2048*ct}")
        return r
    q = []
    for c in range(NS - 1): q += [("c", c)] * 9
    wait_chunk(0); a.e("s_barrier")
    k.stamp(2)
    for r in breads(0): a.e(r)
    pend = []
    for s in range(18):
        c, ks = divmod(s, 2); b = s & 1
        fill = []
        if s + 1 < 18:
            if ks == 1:
                wait_chunk(c + 1); a.e("s_barrier")
                nc = c - 1 + NS
                if nc < 9 and not any(x == ("c", nc) for x in q):
                    pend = dma_chunk(nc, vx, vw, 8*73728); q += [("c", nc)] * 9
            fill = breads(s + 1)
        a.e("s_waitcnt lgkmcnt(0)")
        seq = []
        for i in range(20):
            ct, rt = divmod(i, 2)
            D = acc + 8*ct + 4*rt
            seq.append(f"v_mfma_f32_16x16x32_bf16 {vr(D,4)}, {vr(FX[b]+4*rt,4)}, {vr(FW[b]+4*ct,4)}, {'0' if s == 0 else vr(D,4)}")
            if i < 12 and fill: seq.append(fill.pop(0))
            elif i >= 12 and i % 2 == 0 and pend: seq.append(pend.pop(0))
        for x in seq: a.e(x)
        if ks == 0:
            while pend: a.e(pend.pop(0))
    k.stamp(3)
    for x in FX: V.put(x, 8)
    for x in FW: V.put(x, 40)
    BF = V.get(40, 4)
    for ct in range(10):
        for i in range(4):
            a.e(f"v_cvt_pk_bf16_f32 v{BF+4*ct+i}, v{acc+8*ct+2*i}, v{acc+8*ct+2*i+1}")
    for qq in range(5):
        for kt in range(2):
            Dr = acc + 16*qq + 8*kt; Di = Dr + 4
            X = BF + 4*qq; Y = BF + 4*(5+qq)
            a.e(f"v_mfma_f32_16x16x32_bf16 {vr(Dr,4)}, {vr(TC[kt],4)}, {vr(X,4)}, 0")
            a.e(f"v_mfma_f32_16x16x32_bf16 {vr(Di,4)}, {vr(TN[kt],4)}, {vr(X,4)}, 0")
            a.e(f"v_mfma_f32_16x16x32_bf16 {vr(Dr,4)}, {vr(TS[kt],4)}, {vr(Y,4)}, {vr(Dr,4)}")
            a.e(f"v_mfma_f32_16x16x32_bf16 {vr(Di,4)}, {vr(TC[kt],4)}, {vr(Y,4)}, {vr(Di,4)}")
    a.e(f"v_and_b32 v{t0}, 15, v{lane}\nv_lshrrev_b32 v{t1}, 4, v{lane}\nv_mul_u32_u24 v{t1}, 1280, v{t1}\nv_lshl_add_u32 v{t0}, v{t0}, 2, v{t1}")
    a.e(f"s_mul_i32 s53, s{S_WAVE}, 10240\nv_add_u32 v{t0}, s53, v{t0}")
    a.e("s_barrier")
    GP = V.get(40, 4)
    for qq in range(5):
        for kt in range(2):
            for i in range(4):
                Dr = acc + 16*qq + 8*kt
                r = GP + 8*qq + 4*kt + i
                a.e(f"v_cvt_pk_bf16_f32 v{r}, v{Dr+i}, v{Dr+4+i}")
                a.e(f"ds_write_b32 v{t0}, v{r} offset:{((16*kt+i)*80 + 16*qq)*4}")
    a.e(f"v_lshlrev_b32 v{t1}, 2, v0")
    a.e("s_waitcnt lgkmcnt(0)\ns_barrier")
    for i in range(10):
        a.e(f"ds_read2st64_b32 {vr(acc+4*i,2)}, v{t1} offset0:{4*i} offset1:{4*i+40}")
        a.e(f"ds_read2st64_b32 {vr(acc+4*i+2,2)}, v{t1} offset0:{4*i+80} offset1:{4*i+120}")
        if i == 6: a.e("s_waitcnt lgkmcnt(0)")
    a.e(f"s_mul_i32 s53, s{S_RB}, 320\ns_mul_i32 s54, s{S_CB}, 80\ns_add_u32 s53, s53, s54\ns_lshl_b32 s53, s53, 4\ns_add_u32 s53, s53, {WS_G}")
    go = [V.get() for _ in range(10)]
    for i in range(10):
        a.e(f"v_add_u32 v{t0}, {256*i}, v0")
        divc(a, t2, t0, 80, 2560)
        a.e(f"v_mul_u32_u24 v{t2}, {5120-80}, v{t2}\nv_add_lshl_u32 v{go[i]}, v{t2}, v{t0}, 4")
    a.e("s_waitcnt lgkmcnt(0)")
    for i in range(10):
        a.e(f"buffer_store_dwordx4 {vr(acc+4*i,4)}, v{go[i]}, s[{R_WS}:{R_WS+3}], s53 offen")
    k.stamp(6)
    k.end(0, 256, 256)
    return 163840


def k2(a):
    k = K(a, "p2_kernel", 256)
    V = Alloc(1, 256)
    lane = V.get(); t0 = V.get(); t1 = V.get(); t2 = V.get(); t3 = V.get()
    L_WP, L_KV, L_G = 0, 2048, 8192
    S_HP, S_K1, S_C2 = 63, 64, 65
    a.e(f"v_and_b32 v{lane}, 63, v0\nv_lshrrev_b32 v{t0}, 6, v0\nv_readfirstlane_b32 s{S_WAVE}, v{t0}")
    a.e(f"s_and_b32 s48, s2, 7\ns_lshl_b32 s{S_HP}, s48, 1\ns_bfe_u32 s49, s2, 0x10003\ns_add_u32 s{S_HP}, s{S_HP}, s49\ns_lshr_b32 s{S_RB}, s2, 4")
    a.e(f"s_lshl_b32 s{S_K1}, s48, 2\ns_bfe_u32 s49, s2, 0x20003\ns_add_u32 s{S_K1}, s{S_K1}, s49\ns_lshr_b32 s{S_C2}, s2, 5")
    a.e(f"s_mov_b32 s{S_L}, {LOG2E}\ns_mov_b32 s{S_L+1}, {LOG2E}")
    a.e("s_waitcnt lgkmcnt(0)")
    srd(a, R_WS, S_WS, WS_SIZE); srd(a, R_P, S_WPHI, 32*648); srd(a, R_OUT, S_OUT, 2048*2304)
    a.e(f"s_lshl_b32 s67, s{S_HP}, 1")
    nwp = wphi_dma(a, V, lane, 2, 67, L_WP)
    Q = V.get(12, 4)
    a.e(f"s_lshl_b32 s53, s{S_RB}, 4\ns_add_u32 s53, s53, s{S_HP}\ns_lshl_b32 s53, s53, 2\ns_add_u32 s53, s53, s{S_WAVE}\ns_mul_i32 s53, s53, 2304\ns_add_u32 s53, s53, {WS_Q}")
    a.e(f"v_lshlrev_b32 v{t0}, 4, v{lane}\nv_lshlrev_b32 v{t1}, 2, v{lane}")
    a.e(f"buffer_load_dwordx4 {vr(Q,4)}, v{t0}, s[{R_WS}:{R_WS+3}], s53 offen")
    a.e(f"buffer_load_dwordx4 {vr(Q+4,4)}, v{t0}, s[{R_WS}:{R_WS+3}], s53 offen offset:1024")
    a.e(f"buffer_load_dword v{Q+8}, v{t1}, s[{R_WS}:{R_WS+3}], s53 offen offset:2048")
    for i in (9, 10, 11): a.e(f"v_mov_b32 v{Q+i}, 0")
    PL = V.get(128, 4)
    u0, u1 = V.get(), V.get()
    a.e(f"v_lshlrev_b32 v{u0}, 4, v0\nv_add_u32 v{t0}, 4096, v{u0}\nv_mov_b32 v{t3}, {OOB}\nv_cmp_gt_u32 vcc, 104, v0\nv_cndmask_b32 v{u1}, v{t3}, v{t0}, vcc")
    a.e(f"s_mul_i32 s53, s{S_HP}, {16*5760}\ns_add_u32 s53, s53, {WS_PART}")
    for r in range(16):
        a.e(f"buffer_load_dwordx4 {vr(PL+4*r,4)}, v{u0}, s[{R_WS}:{R_WS+3}], s53 offen")
        a.e(f"buffer_load_dwordx4 {vr(PL+64+4*r,4)}, v{u1}, s[{R_WS}:{R_WS+3}], s53 offen")
        if r < 15: a.e("s_add_u32 s53, s53, 5760")
    ga, gb = V.get(), V.get()
    a.e(f"v_bfe_u32 v{t0}, v{lane}, 2, 2\nv_and_b32 v{t1}, 3, v{lane}\nv_lshl_add_u32 v{ga}, v{t0}, 3, v{t1}\nv_and_b32 v{gb}, 15, v{lane}\nv_add_u32 v{gb}, 64, v{gb}")
    a.e(f"s_mul_i32 s53, s{S_C2}, 72\ns_cmp_ge_u32 s{S_C2}, 4\ns_cselect_b32 s54, -16, 16\ns_cselect_b32 s55, 576, 0")
    a.e(f"s_mul_i32 s53, s53, s54\ns_lshl_b32 s55, s55, 4\ns_add_u32 s53, s53, s55")
    a.e(f"v_lshrrev_b32 v{t0}, 4, v{lane}\nv_mul_u32_u24 v{t0}, 5120, v{t0}\nv_add_u32 v{t0}, s53, v{t0}")
    a.e(f"v_mul_lo_u32 v{ga}, v{ga}, s54\nv_mul_lo_u32 v{gb}, v{gb}, s54\nv_add_u32 v{ga}, v{ga}, v{t0}\nv_add_u32 v{gb}, v{gb}, v{t0}")
    a.e(f"v_and_b32 v{t1}, 8, v{lane}\nv_cmp_eq_u32 vcc, 0, v{t1}\nv_cndmask_b32 v{gb}, v{t3}, v{gb}, vcc")
    a.e(f"s_lshl_b32 s55, s{S_K1}, 2\ns_add_u32 s55, s55, s{S_WAVE}\ns_mul_i32 s55, s55, {4*5120}\ns_add_u32 s55, s55, {WS_G}")
    a.e(f"s_lshl_b32 s56, s{S_WAVE}, 10")
    for mt in range(5):
        if mt < 4:
            a.e(f"s_mul_i32 s57, s54, {32*(mt>>1) + 4*(mt&1)}\nv_add_u32 v{t1}, s57, v{ga}")
        a.e(f"s_add_u32 m0, s56, {L_G + mt*4096}")
        a.e(f"buffer_load_dwordx4 v{t1 if mt < 4 else gb}, s[{R_WS}:{R_WS+3}], s55 offen lds")
    V.put(ga); V.put(gb)
    k.stamp(1)
    a.e(f"v_mov_b32 v{t0}, 0\nv_mov_b32 v{t1}, 0\nv_lshlrev_b32 v{t2}, 3, v0")
    a.e(f"ds_write_b64 v{t2}, {vr(t0,2)} offset:{L_KV}\nds_write_b64 v{t2}, {vr(t0,2)} offset:{L_KV+2048}")
    a.e(f"s_waitcnt vmcnt({3+32+5}) lgkmcnt(0)\ns_barrier")
    F = wphi_frags(a, V, lane, 1, 1, L_WP)
    a.e(f"s_waitcnt vmcnt({32+5})")
    T = V.get(16, 4); Tx = V.get(16, 4)
    for (D, tt) in ((T, 0), (Tx, 1)):
        for w in range(3):
            a.e(f"v_mfma_f32_32x32x16_bf16 {vr(D,16)}, {vr(F[0][tt][w],4)}, {vr(Q+4*w,4)}, {'0' if w == 0 else vr(D,16)}")
    for tt in range(2):
        for w in range(3): V.put(F[0][tt][w], 4)
    V.put(Q, 12)
    R = V.get(22, 2)
    softmax2(a, V, T, Tx, R, R + 10)
    for r in (9, 19, 20, 21): a.e(f"v_mov_b32 v{R+r}, 0")
    for j in range(9): a.e(f"v_permlane32_swap_b32 v{R+j}, v{R+10+j}")
    k.stamp(2)
    for r in range(1, 16):
        a.e(f"s_waitcnt vmcnt({5 + 2*(15-r)})")
        for h in range(2):
            for p in range(2):
                a.e(f"v_pk_add_f32 {vr(PL+64*h+2*p,2)}, {vr(PL+64*h+2*p,2)}, {vr(PL+64*h+4*r+2*p,2)}")
    k.stamp(3)
    for h in range(2):
        a.e(f"v_add_u32 v{t0}, {256*h}, v0")
        divc(a, t1, t0, 20, 512)
        a.e(f"v_mul_u32_u24 v{t2}, 20, v{t1}\nv_sub_u32 v{t0}, v{t0}, v{t2}\nv_mul_u32_u24 v{t0}, 96, v{t0}")
        a.e(f"v_cmp_le_u32 vcc, 9, v{t1}\nv_subrev_u32 v{t2}, 9, v{t1}\nv_cndmask_b32 v{t1}, v{t1}, v{t2}, vcc\nv_add_u32 v{t2}, 1920, v{t0}\nv_cndmask_b32 v{t0}, v{t0}, v{t2}, vcc")
        a.e(f"v_lshl_add_u32 v{t0}, v{t1}, 3, v{t0}\nv_add_u32 v{t2}, 12, v{t0}")
        a.e(f"v_cmp_le_u32 vcc, 5, v{t1}\nv_cndmask_b32 v{t3}, v{t0}, v{t2}, vcc\nv_cmp_le_u32 vcc, 4, v{t1}\nv_cndmask_b32 v{t0}, v{t0}, v{t2}, vcc")
        a.e(f"v_cvt_pk_bf16_f32 v{PL+64*h}, v{PL+64*h}, v{PL+64*h+1}\nv_cvt_pk_bf16_f32 v{PL+64*h+1}, v{PL+64*h+2}, v{PL+64*h+3}")
        if h: a.e(f"v_cmp_gt_u32 vcc, 104, v0\ns_and_saveexec_b64 s[54:55], vcc")
        a.e(f"ds_write_b32 v{t3}, v{PL+64*h} offset:{L_KV}\nds_write_b32 v{t0}, v{PL+64*h+1} offset:{L_KV+4}")
        if h: a.e("s_mov_b64 exec, s[54:55]")
    V.put(PL, 128)
    DF = V.get(16, 4)
    e0, e1 = V.get(), V.get()
    a.e(f"v_and_b32 v{t0}, 15, v{lane}\ns_lshl_b32 s53, s{S_WAVE}, 4\nv_add_u32 v{t0}, s53, v{t0}\nv_lshrrev_b32 v{t1}, 4, v{lane}\nv_lshlrev_b32 v{t1}, 2, v{t1}")
    for ks in range(4):
        for jj in range(4):
            a.e(f"v_add_u32 v{t2}, {16*ks+jj}, v{t1}\nv_mul_u32_u24 v{t2}, v{t2}, v{t0}\nv_and_b32 v{t2}, 63, v{t2}\nv_cvt_f32_u32 v{t2}, v{t2}\nv_mul_f32 v{t2}, 0x3c800000, v{t2}")
            a.e(f"v_cos_f32 v{e0}, v{t2}\nv_sin_f32 v{e1}, v{t2}\nv_cvt_pk_bf16_f32 v{DF+4*ks+jj}, v{e0}, v{e1}")
    V.put(e0); V.put(e1)
    a.e(f"v_bfe_u32 v{t0}, v{lane}, 3, 2\nv_and_b32 v{t1}, 3, v{lane}\nv_lshl_add_u32 v{t0}, v{t0}, 2, v{t1}\nv_bfe_u32 v{t1}, v{lane}, 2, 1")
    a.e(f"v_lshl_add_u32 v{t2}, v{t1}, 3, v{t0}\nv_lshl_add_u32 v{t1}, v{t1}, 1, 8\nv_cmp_lt_u32 vcc, v{t0}, v{t1}\nv_cndmask_b32 v{t2}, 19, v{t2}, vcc")
    a.e(f"v_cmp_ne_u32 vcc, 10, v{t0}\nv_cndmask_b32 v{t2}, 18, v{t2}, vcc\nv_mul_u32_u24 v{t2}, 96, v{t2}\nv_lshrrev_b32 v{t0}, 5, v{lane}\nv_mad_u32_u24 v{t2}, v{t0}, 48, v{t2}")
    a.e("s_waitcnt vmcnt(0) lgkmcnt(0)\ns_barrier")
    KF = V.get(24, 4)
    for X in range(2):
        for w in range(3):
            a.e(f"ds_read_b128 {vr(KF+12*X+4*w,4)}, v{t2} offset:{L_KV + 1920*X + 16*w}")
    GF = V.get(80, 4)
    a.e(f"v_lshlrev_b32 v{t3}, 4, v{lane}")
    for i in range(8): a.e(f"ds_read_b128 {vr(GF+4*i,4)}, v{t3} offset:{L_G + 1024*i}")
    a.e("s_waitcnt lgkmcnt(8)")
    for X, D in enumerate((T, Tx)):
        for w in range(3):
            a.e(f"v_mfma_f32_32x32x16_bf16 {vr(D,16)}, {vr(KF+12*X+4*w,4)}, {vr(R+10*X+4*w,4)}, {'0' if w == 0 else vr(D,16)}")
    a.e("s_waitcnt lgkmcnt(0)")
    for i in range(8, 20): a.e(f"ds_read_b128 {vr(GF+4*i,4)}, v{t3} offset:{L_G + 1024*i}")
    a.e(f"v_bfe_u32 v{t0}, v{lane}, 4, 1\nv_lshlrev_b32 v{t1}, 14, v{t0}\nv_lshlrev_b32 v{t0}, 11, v{t0}\nv_and_b32 v{t2}, 15, v{lane}\nv_lshl_add_u32 v{t1}, v{t2}, 4, v{t1}\nv_lshl_add_u32 v{t0}, v{t2}, 3, v{t0}")
    a.e(f"v_lshrrev_b32 v{t2}, 5, v{lane}\nv_lshl_add_u32 v{t1}, v{t2}, 8, v{t1}\nv_cmp_eq_u32 vcc, 1, v{t2}\nv_mov_b32 v{t2}, {OOB}\nv_cndmask_b32 v{t0}, v{t2}, v{t0}, vcc")
    a.e(f"s_lshl_b32 s53, s{S_RB}, 2\ns_add_u32 s53, s53, s{S_WAVE}\ns_lshl_b32 s53, s53, 5\ns_add_u32 s53, s53, s{S_HP}")
    a.e(f"s_lshl_b32 s54, s53, 7\ns_add_u32 s54, s54, {WS_OL}\ns_lshl_b32 s53, s53, 10\ns_add_u32 s53, s53, {WS_O}")
    OP = V.get(12, 4)
    for X, D in enumerate((T, Tx)):
        a.e(f"v_add_f32 v{D+10}, 0x358637bd, v{D+10}\nv_rcp_f32 v{D+10}, v{D+10}")
    for X, D in enumerate((T, Tx)):
        for i in range(5):
            a.e(f"v_pk_mul_f32 {vr(D+2*i,2)}, {vr(D+2*i,2)}, {vr(D+10,2)} op_sel_hi:[1,0]")
        for i in range(4):
            a.e(f"v_cvt_pk_bf16_f32 v{OP+4*X+i}, v{D+2*i}, v{D+2*i+1}")
        a.e(f"v_cvt_pk_bf16_f32 v{OP+8+X}, v{D+8}, v{D+9}")
        a.e(f"buffer_store_dwordx4 {vr(OP+4*X,4)}, v{t1}, s[{R_WS}:{R_WS+3}], s53 offen offset:{512*X}")
    a.e(f"buffer_store_dwordx2 {vr(OP+8,2)}, v{t0}, s[{R_WS}:{R_WS+3}], s54 offen")
    k.stamp(4)
    Y = V.get(20, 4)
    a.e("s_waitcnt lgkmcnt(0)")
    for ks in range(4):
        for mt in range(5):
            a.e(f"v_mfma_f32_16x16x32_bf16 {vr(Y+4*mt,4)}, {vr(GF+4*(4*mt+ks),4)}, {vr(DF+4*ks,4)}, {'0' if ks == 0 else vr(Y+4*mt,4)}")
    a.e(f"v_and_b32 v{t0}, 15, v{lane}\ns_lshl_b32 s53, s{S_WAVE}, 9\ns_add_u32 s53, s53, s{S_K1}\nv_lshl_add_u32 v{t0}, v{t0}, 5, s53")
    a.e(f"s_cmp_ge_u32 s{S_C2}, 4\ns_cselect_b32 s54, -1, 1\nv_mul_lo_u32 v{t0}, v{t0}, s54\nv_and_b32 v{t0}, 2047, v{t0}\nv_mul_u32_u24 v{t0}, 2304, v{t0}")
    a.e(f"v_lshrrev_b32 v{t2}, 4, v{lane}\nv_lshl_add_u32 v{t1}, v{t2}, 3, v{t0}\nv_lshl_add_u32 v{t0}, v{t2}, 4, v{t0}")
    a.e(f"v_cmp_gt_u32 vcc, 2, v{t2}\nv_mov_b32 v{t2}, {OOB}\nv_cndmask_b32 v{t1}, v{t2}, v{t1}, vcc")
    a.e(f"s_mul_i32 s53, s{S_C2}, 144\ns_add_u32 s53, s53, 1152")
    YP = V.get(12, 4)
    for i in range(10): a.e(f"v_cvt_pk_bf16_f32 v{YP+i}, v{Y+2*i}, v{Y+2*i+1}")
    a.e(f"buffer_store_dwordx4 {vr(YP,4)}, v{t0}, s[{R_OUT}:{R_OUT+3}], s53 offen")
    a.e(f"buffer_store_dwordx4 {vr(YP+4,4)}, v{t0}, s[{R_OUT}:{R_OUT+3}], s53 offen offset:64")
    a.e(f"buffer_store_dwordx2 {vr(YP+8,2)}, v{t1}, s[{R_OUT}:{R_OUT+3}], s53 offen offset:128")
    k.stamp(5)
    k.end(1, 256, 256)
    return 32768

def k3(a):
    k = K(a, "p3_kernel", 256)
    V = Alloc(1, 256)
    lane = V.get(); t0 = V.get(); t1 = V.get(); t2 = V.get(); t3 = V.get()
    S_RQ, S_C3 = 62, 63
    a.e(f"v_and_b32 v{lane}, 63, v0\nv_lshrrev_b32 v{t0}, 6, v0\nv_readfirstlane_b32 s{S_WAVE}, v{t0}")
    a.e(f"s_and_b32 s48, s2, 7\ns_lshl_b32 s{S_RQ}, s48, 2\ns_bfe_u32 s49, s2, 0x20003\ns_add_u32 s{S_RQ}, s{S_RQ}, s49\ns_lshr_b32 s{S_C3}, s2, 5")
    vw = [V.get() for _ in range(5)]
    for j in range(5):
        a.e(f"v_add_u32 v{t0}, {64*j}, v{lane}")
        divc(a, t1, t0, 10, 320)
        a.e(f"v_mul_u32_u24 v{t2}, 10, v{t1}\nv_sub_u32 v{t0}, v{t0}, v{t2}\nv_mul_u32_u24 v{t1}, 1152, v{t1}\nv_cmp_gt_u32 vcc, 9, v{t0}\nv_lshl_add_u32 v{t1}, v{t0}, 4, v{t1}")
        a.e(f"v_mov_b32 v{t3}, {OOB}\nv_cndmask_b32 v{vw[j]}, v{t3}, v{t1}, vcc")
    a.e("s_waitcnt lgkmcnt(0)")
    srd(a, R_WS, S_WS, WS_SIZE); srd(a, R_W, S_WO, 576*1152); srd(a, R_OUT, S_OUT, 2048*2304)
    a.e(f"s_mul_i32 s53, s{S_C3}, 144\ns_mul_i32 s54, s{S_WAVE}, {32*1152}\ns_add_u32 s53, s53, s54\ns_mul_i32 s54, s{S_WAVE}, 5120")
    k.stamp(1)
    for gi in range(5):
        for j in range(5):
            a.e(f"s_add_u32 m0, s54, {gi*20480 + j*1024}")
            a.e(f"buffer_load_dwordx4 v{vw[j]}, s[{R_W}:{R_W+3}], s53 offen lds")
        a.e(f"s_add_u32 s53, s53, {128*1152}")
    OF = V.get(72, 4)
    a.e(f"s_lshl_b32 s53, s{S_RQ}, 2\ns_add_u32 s53, s53, s{S_WAVE}\ns_lshl_b32 s54, s53, 11\ns_add_u32 s54, s54, {WS_OL}\ns_lshl_b32 s53, s53, 14\ns_add_u32 s53, s53, {WS_O}")
    a.e(f"v_lshlrev_b32 v{t0}, 4, v{lane}\nv_and_b32 v{t1}, 15, v{lane}\nv_lshrrev_b32 v{t2}, 4, v{lane}\nv_lshlrev_b32 v{t2}, 8, v{t2}\nv_lshl_add_u32 v{t1}, v{t1}, 3, v{t2}")
    for s in range(16):
        a.e(f"buffer_load_dwordx4 {vr(OF+4*s,4)}, v{t0}, s[{R_WS}:{R_WS+3}], s53 offen offset:{(s&3)*1024}")
        if s & 3 == 3: a.e("s_add_u32 s53, s53, 4096")
    for u in range(2):
        for h in range(2):
            a.e(f"buffer_load_dwordx2 {vr(OF+64+4*u+2*h,2)}, v{t1}, s[{R_WS}:{R_WS+3}], s54 offen offset:{1024*u + 128*h}")
    am, a4, lm, l4 = V.get(), V.get(), V.get(), V.get()
    a.e(f"v_lshrrev_b32 v{t0}, 5, v{lane}\nv_mul_u32_u24 v{t0}, 18, v{t0}\nv_bfe_u32 v{t1}, v{lane}, 4, 1\nv_lshl_add_u32 v{t0}, v{t1}, 3, v{t0}\nv_bfe_u32 v{t1}, v{lane}, 2, 2\nv_add_u32 v{t0}, v{t0}, v{t1}\nv_mul_u32_u24 v{t0}, 160, v{t0}")
    a.e(f"v_and_b32 v{t2}, 3, v{lane}\nv_lshl_add_u32 v{am}, v{t2}, 4, v{t0}\nv_lshl_add_u32 v{a4}, v{t2}, 3, v{t0}")
    a.e(f"v_lshrrev_b32 v{t0}, 4, v{lane}\nv_mul_u32_u24 v{t0}, 72, v{t0}\nv_bfe_u32 v{t1}, v{lane}, 3, 1\nv_mad_u32_u24 v{t0}, v{t1}, 18, v{t0}\nv_bfe_u32 v{t1}, v{lane}, 2, 1\nv_add3_u32 v{t0}, v{t0}, v{t1}, 16\nv_mul_u32_u24 v{t0}, 160, v{t0}")
    a.e(f"v_lshl_add_u32 v{lm}, v{t2}, 4, v{t0}\nv_lshl_add_u32 v{l4}, v{t2}, 3, v{t0}")
    am2, a42 = V.get(), V.get()
    a.e(f"v_add_u32 v{am2}, {8*5760}, v{am}\nv_add_u32 v{a42}, {8*5760}, v{a4}")
    a.e("s_waitcnt vmcnt(20)\ns_barrier")
    k.stamp(2)
    FW = [V.get(20, 4), V.get(20, 4)]
    Y = V.get(20, 4)
    def rd(s):
        r = []
        for mt in range(5):
            for uu in range(2):
                co = (64*(mt>>1) + 8*(mt&1)) if mt < 4 else 128
                if s < 16:
                    ad = (am if s < 8 else am2) if mt < 4 else (a4 if s < 8 else a42)
                    off = (s & 7)*5760 + uu*640 + co
                else:
                    ad = lm if mt < 4 else l4
                    off = (8*(s-16) + uu)*5760 + co
                r.append(f"ds_read_b64_tr_b16 {vr(FW[s&1]+4*mt+2*uu,2)}, v{ad} offset:{off}")
        return r
    for x in rd(0): a.e(x)
    for s in range(18):
        fill = rd(s+1) if s < 17 else []
        left = (19 - s) if s < 16 else (2 if s == 16 else 0)
        a.e(f"s_waitcnt vmcnt({left}) lgkmcnt(0)")
        for mt in range(5):
            a.e(f"v_mfma_f32_16x16x32_bf16 {vr(Y+4*mt,4)}, {vr(FW[s&1]+4*mt,4)}, {vr(OF+4*s,4)}, {'0' if s == 0 else vr(Y+4*mt,4)}")
            for x in fill[3*mt:3*mt+3]: a.e(x)
    k.stamp(3)
    a.e(f"v_and_b32 v{t0}, 15, v{lane}\nv_mul_u32_u24 v{t0}, 2304, v{t0}")
    a.e(f"v_lshrrev_b32 v{t2}, 4, v{lane}\nv_lshl_add_u32 v{t1}, v{t2}, 3, v{t0}\nv_lshl_add_u32 v{t0}, v{t2}, 4, v{t0}")
    a.e(f"v_cmp_gt_u32 vcc, 2, v{t2}\nv_mov_b32 v{t2}, {OOB}\nv_cndmask_b32 v{t1}, v{t2}, v{t1}, vcc")
    a.e(f"s_lshl_b32 s53, s{S_RQ}, 2\ns_add_u32 s53, s53, s{S_WAVE}\ns_mul_i32 s53, s53, {16*2304}\ns_mul_i32 s54, s{S_C3}, 144\ns_add_u32 s53, s53, s54")
    YP = V.get(12, 4)
    for i in range(10): a.e(f"v_cvt_pk_bf16_f32 v{YP+i}, v{Y+2*i}, v{Y+2*i+1}")
    a.e(f"buffer_store_dwordx4 {vr(YP,4)}, v{t0}, s[{R_OUT}:{R_OUT+3}], s53 offen")
    a.e(f"buffer_store_dwordx4 {vr(YP+4,4)}, v{t0}, s[{R_OUT}:{R_OUT+3}], s53 offen offset:64")
    a.e(f"buffer_store_dwordx2 {vr(YP+8,2)}, v{t1}, s[{R_OUT}:{R_OUT+3}], s53 offen offset:128")
    k.stamp(4)
    k.end(2, 256, 256)
    return 102400

def kdiag(a, spec):
    name = "diag_kernel"
    a.raw(f".globl {name}\n.p2align 8\n.type {name},@function\n{name}:")
    a.hist = []
    a.e("s_cmp_ge_u32 s2, 1\ns_cbranch_scc1 L_end_diag")
    a.e("s_load_dwordx2 s[14:15], s[0:1], 88\ns_waitcnt lgkmcnt(0)")
    kind, slot, wg, idx = spec
    a.e(f"s_add_u32 s14, s14, {WS_STAMP + slot*(1<<20) + wg*256}\ns_addc_u32 s15, s15, 0")
    a.e("s_load_dwordx16 s[16:31], s[14:15], 0\ns_memrealtime s[4:5]\ns_waitcnt lgkmcnt(0)")
    if kind == "none": a.e("s_mov_b32 s6, 0")
    elif kind == "const": a.e(f"s_mov_b32 s6, {idx}")
    elif kind == "now": a.e("s_sub_u32 s6, s4, s29")
    elif kind == "cyc": a.e(f"s_mul_i32 s6, s{16+idx}, 6554\ns_lshr_b32 s6, s6, 16")
    elif kind == "rt": a.e("s_sub_u32 s6, s28, s29")
    a.e("s_min_u32 s6, s6, 20000\ns_add_u32 s6, s6, s4")
    a.label("L_diag_spin")
    a.e("s_memrealtime s[8:9]\ns_waitcnt lgkmcnt(0)\ns_sub_u32 s10, s8, s6\ns_cmp_lt_i32 s10, 0\ns_cbranch_scc1 L_diag_spin")
    a.label("L_end_diag")
    a.e("s_endpgm")
    a.raw(f""".section .rodata,"a"
.p2align 6
.amdhsa_kernel {name}
  .amdhsa_next_free_vgpr 8
  .amdhsa_next_free_sgpr 48
  .amdhsa_accum_offset 8
  .amdhsa_group_segment_fixed_size 0
  .amdhsa_kernarg_size 96
  .amdhsa_user_sgpr_count 2
  .amdhsa_user_sgpr_kernarg_segment_ptr 1
  .amdhsa_system_sgpr_workgroup_id_x 1
.end_amdhsa_kernel
.text""")

def header(launches):
    s = open(f"cdna_kernels/{NAME}.s.ref").read().split("; Override launch")[0]
    if len(launches) == 1 and "--list" not in sys.argv:
        (k, g, b, lds) = launches[0]
        s += f"; @launch grid=({g},1,1) block=({b},1,1) lds={lds}\n"
        launches = []
    for (k, g, b, lds) in launches:
        s += f"; @launch kernel={k} grid=({g},1,1) block=({b},1,1) lds={lds}\n"
    s += '.amdgcn_target "amdgcn-amd-amdhsa--gfx950"\n.text\n'
    return s

if __name__ == "__main__":
    STAMPS = "--stamps" in sys.argv
    FUSED = "--fused" in sys.argv
    a = Asm()
    l1 = k1(a, (2, 2))
    l2 = k2(a)
    l3 = k3(a)
    out = sys.argv[1]
    L = [("p1_kernel", 256, 256, l1), ("p2_kernel", 256, 256, l2), ("p3_kernel", 256, 256, l3)]
    if FUSED: L = [(NAME + "_kernel", 256, 256, l1)]
    for x in sys.argv:
        if x.startswith("--diag="):
            p = x[7:].split(",")
            kdiag(a, (p[0], int(p[1]), int(p[2]), int(p[3]))); L.append(("diag_kernel", 1, 64, 0))
    open(out, "w").write(header(L) + a.text())
    print("instrs", a.count, "nops", a.nops)
```

```python
import sys, math, os
from asmb import *

NAME = "concat_heads__linear_kernel_hedgehog__spectral_fnet__prompt"
WS_Q = 0
WS_PART = 4 << 20
WS_O = 8 << 20
WS_OL = WS_O + (2 << 20)
WS_G = 12 << 20
WS_SIZE = 16 << 20
WS_STAMP = 32 << 20
OOB = 0x40000000
LOG2E = 0x3fb8aa3b
STAMPS = False
AMP = int(os.environ.get("AMP", "1"))

S_AX, S_W, S_WPHI, S_WO, S_BX, S_WS, S_HRE, S_HIM, S_OUT, S_DBG = 4, 6, 8, 10, 12, 14, 16, 18, 20, 22
R_X, R_W, R_WS, R_P, R_OUT = 24, 28, 32, 36, 40
S_WAVE = 44
S_L = 46
S_T = 48
S_ST = 76

FUSED = False
class K:
    def __init__(self, a, name, nwg):
        self.a = a; self.name = name; self.nst = 0
        if FUSED and name != "p1_kernel":
            a.hist = []
            self.stamp()
            if STAMPS: a.e("s_memrealtime s[74:75]")
            return
        if FUSED: name = NAME + "_kernel"
        a.raw(f".globl {name}\n.p2align 8\n.type {name},@function\n{name}:")
        a.hist = []
        a.e(f"s_cmp_ge_u32 s2, {nwg}")
        a.e(f"s_cbranch_scc1 L_end_{'p3_kernel' if FUSED else name}")
        self.stamp()
        if STAMPS: a.e("s_memrealtime s[74:75]")
        a.e("s_load_dwordx8 s[4:11], s[0:1], 0")
        a.e("s_load_dwordx2 s[12:13], s[0:1], 32")
        a.e("s_load_dwordx4 s[16:19], s[0:1], 56")
        a.e("s_load_dwordx4 s[20:23], s[0:1], 72")
        a.e("s_load_dwordx2 s[14:15], s[0:1], 88")
    def stamp(self, i=None):
        if not STAMPS: return
        if i is None: i = self.nst
        self.nst = max(self.nst, i + 1)
        assert i < 12
        self.a.e(f"s_memtime s[{S_ST+2*i}:{S_ST+2*i+1}]")
    def end(self, slot, vgpr, acc):
        a = self.a
        a.label(f"L_fin_{self.name}")
        if STAMPS:
            a.e("s_waitcnt vmcnt(0) lgkmcnt(0)")
            a.e(f"s_memtime s[{S_ST+22}:{S_ST+23}]")
            a.e(f"s_memrealtime s[{S_ST+24}:{S_ST+25}]")
            a.e("s_waitcnt lgkmcnt(0)")
            a.e("s_mov_b64 exec, 1")
            a.e(f"s_lshl_b32 s48, s2, 2\ns_add_u32 s48, s48, s{S_WAVE}\ns_lshl_b32 s48, s48, 6\ns_add_u32 s48, s48, {WS_STAMP + slot*(1<<20)}")
            a.e("v_mov_b32 v1, s48")
            for i in range(13):
                if i < 12 and i > 0: a.e(f"s_sub_u32 s{S_ST+2*i}, s{S_ST+2*i}, s{S_ST}")
                a.e(f"v_mov_b32 v2, s{S_ST+2*i}")
                a.e(f"global_store_dword v1, v2, s[{S_WS}:{S_WS+1}] offset:{4*i}")
            a.e(f"v_mov_b32 v2, s74\nglobal_store_dword v1, v2, s[{S_WS}:{S_WS+1}] offset:52")
            a.e("s_waitcnt vmcnt(0)")
        if FUSED and slot < 2:
            a.e("s_mov_b64 exec, -1")
            a.e("s_waitcnt vmcnt(0) lgkmcnt(0)\ns_barrier")
            a.e(f"s_cmp_lg_u32 s{S_WAVE}, 0\ns_cbranch_scc1 L_gb_done{slot}")
            a.e("buffer_wbl2 sc1\ns_waitcnt vmcnt(0)")
            a.e(f"v_mov_b32 v1, {128*slot}\nv_mov_b32 v2, 1\ns_mov_b64 exec, 1")
            a.e(f"global_atomic_add v1, v2, s[{S_DBG}:{S_DBG+1}] sc1")
            a.e("s_mov_b32 s48, 0")
            a.label(f"L_gb_poll{slot}")
            a.e(f"global_load_dword v2, v1, s[{S_DBG}:{S_DBG+1}] sc1\ns_add_u32 s48, s48, 1\ns_waitcnt vmcnt(0)")
            a.e("v_readfirstlane_b32 s49, v2\ns_cmp_gt_u32 s48, 200000")
            a.e(f"s_cbranch_scc1 L_gb_out{slot}\ns_sleep 2\ns_cmp_lt_u32 s49, 256\ns_cbranch_scc1 L_gb_poll{slot}")
            a.label(f"L_gb_out{slot}")
            a.e("s_mov_b64 exec, -1\nbuffer_inv sc1\ns_waitcnt vmcnt(0)")
            a.label(f"L_gb_done{slot}")
            a.e("s_barrier")
            return
        a.label(f"L_end_{self.name}")
        a.e("s_endpgm")
        if FUSED: self.name = NAME + "_kernel"
        a.raw(f""".section .rodata,"a"
.p2align 6
.amdhsa_kernel {self.name}
  .amdhsa_next_free_vgpr {vgpr}
  .amdhsa_next_free_sgpr 102
  .amdhsa_accum_offset {acc}
  .amdhsa_group_segment_fixed_size 0
  .amdhsa_kernarg_size 96
  .amdhsa_user_sgpr_count 2
  .amdhsa_user_sgpr_kernarg_segment_ptr 1
  .amdhsa_system_sgpr_workgroup_id_x 1
.end_amdhsa_kernel
.text""")

def srd(a, d, base, nbytes):
    a.e(f"s_mov_b32 s{d}, s{base}\ns_and_b32 s{d+1}, s{base+1}, 0xffff\ns_mov_b32 s{d+2}, {nbytes}\ns_mov_b32 s{d+3}, 0x20000")

def divc(a, dst, src, c, maxv):
    for sh in range(8, 24):
        m = (1 << sh) // c + 1
        if m < (1 << 24) and m * maxv < (1 << 32) and all((x * m) >> sh == x // c for x in range(maxv + 1)):
            a.e(f"v_mul_u32_u24 v{dst}, {m}, v{src}\nv_lshrrev_b32 v{dst}, {sh}, v{dst}")
            return
    raise RuntimeError("no magic")

def interleave(a, main, fill, start=0, per=None):
    fill = list(fill)
    n = len(main)
    if per is None: per = max(1, -(-len(fill) // max(1, n - start)))
    for i, m in enumerate(main):
        a.e(m)
        if i >= start:
            for _ in range(per):
                if fill: a.e(fill.pop(0))
    for f in fill: a.e(f)

def wphi_dma(a, V, lane, nheads, s_head0, lds_base):
    tot = nheads * 240
    n = -(-tot // 256)
    t0, t1, t2, t3 = V.get(), V.get(), V.get(), V.get()
    a.e(f"s_mul_i32 s{S_T}, s{s_head0}, 648")
    for i in range(n):
        a.e(f"s_lshl_b32 s{S_T+1}, s{S_WAVE}, 6\ns_add_u32 s{S_T+1}, s{S_T+1}, {i*256}")
        a.e(f"v_add_u32 v{t0}, s{S_T+1}, v{lane}")
        divc(a, t1, t0, 10, 1024)
        a.e(f"v_mul_u32_u24 v{t2}, 10, v{t1}\nv_sub_u32 v{t0}, v{t0}, v{t2}")
        divc(a, t2, t1, 24, 103)
        a.e(f"v_mul_u32_u24 v{t3}, 24, v{t2}\nv_sub_u32 v{t1}, v{t1}, v{t3}")
        a.e(f"v_mul_u32_u24 v{t2}, 648, v{t2}\nv_mad_u32_u24 v{t2}, v{t1}, 36, v{t2}\nv_lshl_add_u32 v{t2}, v{t0}, 2, v{t2}")
        a.e(f"v_cmp_gt_u32 vcc, 18, v{t1}\nv_cmp_gt_u32 s[{S_T+2}:{S_T+3}], 9, v{t0}")
        a.e(f"s_and_b64 vcc, vcc, s[{S_T+2}:{S_T+3}]")
        a.e(f"v_mov_b32 v{t3}, {OOB}\nv_cndmask_b32 v{t2}, v{t3}, v{t2}, vcc")
        a.e(f"s_lshl_b32 s{S_T+1}, s{S_WAVE}, 8\ns_add_u32 m0, s{S_T+1}, {lds_base + i*1024}")
        a.e(f"buffer_load_dword v{t2}, s[{R_P}:{R_P+3}], s{S_T} offen lds")
    for t in (t0, t1, t2, t3): V.put(t)
    return n

def wphi_frags(a, V, lane, nx, hstride, lds_base):
    am, ax, t = V.get(), V.get(), V.get()
    a.e(f"v_and_b32 v{t}, 1, v{lane}\nv_mul_u32_u24 v{ax}, {960*hstride}, v{t}")
    a.e(f"v_bfe_u32 v{t}, v{lane}, 2, 2\nv_mad_u32_u24 v{ax}, v{t}, 40, v{ax}")
    a.e(f"v_add_u32 v{ax}, {lds_base}, v{ax}")
    a.e(f"v_bfe_u32 v{t}, v{lane}, 4, 1\nv_lshl_add_u32 v{am}, v{t}, 4, v{ax}")
    a.e(f"v_bfe_u32 v{t}, v{lane}, 1, 1\nv_lshl_add_u32 v{am}, v{t}, 3, v{am}")
    F = [[[V.get(4) for w in range(3)] for T in range(2)] for X in range(nx)]
    cnt = 0
    for X in range(nx):
        for T in range(2):
            for w in range(3):
                for u in range(2):
                    off = X*960 + (8*w + 4*u)*40 + (32 if T else 0)
                    a.e(f"ds_read_b64_tr_b16 {vr(F[X][T][w]+2*u,2)}, v{ax if T else am} offset:{off}")
                    cnt += 1
                    if cnt % 12 == 0: a.e("s_waitcnt lgkmcnt(0)")
    a.e(f"v_bfe_u32 v{t}, v{lane}, 2, 1\nv_lshrrev_b32 v{am}, 5, v{lane}\nv_cmp_eq_u32 vcc, v{t}, v{am}")
    a.e("s_waitcnt lgkmcnt(0)")
    for X in range(nx):
        for T in range(2):
            for w in range(3):
                for i in range(4):
                    r = F[X][T][w] + i
                    a.e(f"v_cndmask_b32 v{r}, 0, v{r}, vcc")
    for x in (am, ax, t): V.put(x)
    return F

def softmax2(a, V, T, Tx, outp, outn):
    p = [T + i for i in range(16)] + [Tx, Tx + 1]
    c = V.get(2); E = V.get(18, 2); N = V.get(18, 2); S = V.get(4, 2)
    mx, mn = c, c + 1
    a.e(f"v_max3_f32 v{mx}, v{p[0]}, v{p[1]}, v{p[2]}")
    a.e(f"v_min3_f32 v{mn}, v{p[0]}, v{p[1]}, v{p[2]}")
    for i in range(3, 17, 2):
        a.e(f"v_max3_f32 v{mx}, v{mx}, v{p[i]}, v{p[i+1]}")
        a.e(f"v_min3_f32 v{mn}, v{mn}, v{p[i]}, v{p[i+1]}")
    a.e(f"v_max_f32 v{mx}, v{mx}, v{p[17]}")
    a.e(f"v_min_f32 v{mn}, v{mn}, v{p[17]}")
    a.e(f"v_pk_mul_f32 {vr(c,2)}, {vr(c,2)}, s[{S_L}:{S_L+1}] neg_lo:[1,0]")
    for i in range(9):
        a.e(f"v_pk_fma_f32 {vr(E+2*i,2)}, {vr(p[2*i],2)}, s[{S_L}:{S_L+1}], {vr(c,2)} op_sel_hi:[1,1,0]")
        a.e(f"v_pk_fma_f32 {vr(N+2*i,2)}, {vr(p[2*i],2)}, s[{S_L}:{S_L+1}], {vr(c,2)} op_sel:[0,0,1] neg_lo:[1,0,0] neg_hi:[1,0,0]")
    for i in range(18):
        a.e(f"v_exp_f32 v{E+i}, v{E+i}")
        a.e(f"v_exp_f32 v{N+i}, v{N+i}")
    a.e(f"v_pk_add_f32 {vr(S,2)}, {vr(E,2)}, {vr(E+2,2)}")
    a.e(f"v_pk_add_f32 {vr(S+2,2)}, {vr(N,2)}, {vr(N+2,2)}")
    for i in range(2, 9):
        a.e(f"v_pk_add_f32 {vr(S,2)}, {vr(S,2)}, {vr(E+2*i,2)}")
        a.e(f"v_pk_add_f32 {vr(S+2,2)}, {vr(S+2,2)}, {vr(N+2*i,2)}")
    a.e(f"v_add_f32 v{S}, v{S}, v{S+1}")
    a.e(f"v_add_f32 v{S+1}, v{S+2}, v{S+3}")
    a.e(f"v_rcp_f32 v{S}, v{S}")
    a.e(f"v_rcp_f32 v{S+1}, v{S+1}")
    for i in range(9):
        a.e(f"v_pk_mul_f32 {vr(E+2*i,2)}, {vr(E+2*i,2)}, {vr(S,2)} op_sel_hi:[1,0]")
        a.e(f"v_pk_mul_f32 {vr(N+2*i,2)}, {vr(N+2*i,2)}, {vr(S,2)} op_sel:[0,1]")
    for i in range(9):
        a.e(f"v_cvt_pk_bf16_f32 v{outp+i}, v{E+2*i}, v{E+2*i+1}")
        a.e(f"v_cvt_pk_bf16_f32 v{outn+i}, v{N+2*i}, v{N+2*i+1}")
    V.put(c, 2); V.put(E, 18); V.put(N, 18); V.put(S, 4)

NS = 4
SLOT = 36864
LDS_MISC = NS * SLOT
S_XB, S_WB, S_WSTEP, S_CI, S_XC, S_WC = 56, 57, 58, 59, 60, 61
S_RB, S_CB, S_ROLE = 62, 63, 64

def dma_chunk(c, vx, vw, xstep):
    base = (c % NS) * SLOT
    g = []
    pre = f"s_lshl_b32 s{S_XC}, s{S_CI}, 7\ns_add_u32 s{S_XC}, s{S_XC}, s{S_XB}\ns_mul_i32 s{S_WC}, s{S_CI}, s{S_WSTEP}\ns_add_u32 s{S_WC}, s{S_WC}, s{S_WB}\n"
    pre += f"s_add_u32 s{S_CI}, s{S_CI}, 1\ns_cmp_eq_u32 s{S_CI}, 9\ns_cselect_b32 s{S_CI}, 0, s{S_CI}\n"
    for i in range(4):
        t = pre if i == 0 else f"s_add_u32 s{S_XC}, s{S_XC}, {xstep}\n"
        t += f"s_add_u32 m0, s65, {base + i*1024}\n"
        t += f"buffer_load_dwordx4 v{vx[i&1]}, s[{R_X}:{R_X+3}], s{S_XC} offen lds"
        g.append(t)
    for j in range(5):
        g.append(f"s_add_u32 m0, s66, {base + 16384 + j*1024}\nbuffer_load_dwordx4 v{vw[j]}, s[{R_W}:{R_W+3}], s{S_WC} offen lds")
    return g

def k1(a, rot):
    k = K(a, "p1_kernel", 256)
    V = Alloc(1, 256)
    lane = V.get(); t0 = V.get(); t1 = V.get(); t2 = V.get(); t3 = V.get()
    a.e(f"v_and_b32 v{lane}, 63, v0\nv_lshrrev_b32 v{t0}, 6, v0\nv_readfirstlane_b32 s{S_WAVE}, v{t0}")
    a.e("s_and_b32 s48, s2, 7\ns_lshr_b32 s49, s2, 3")
    a.e(f"s_and_b32 s{S_RB}, s48, 3\ns_lshl_b32 s{S_RB}, s{S_RB}, 2\ns_and_b32 s50, s49, 3\ns_add_u32 s{S_RB}, s{S_RB}, s50")
    a.e("s_lshr_b32 s51, s48, 2\ns_lshr_b32 s52, s49, 2")
    if rot:
        a.e(f"s_mul_i32 s{S_CI}, s50, {rot[0]}\ns_mul_i32 s53, s52, {rot[1]}\ns_add_u32 s{S_CI}, s{S_CI}, s53")
        a.e(f"s_mul_i32 s53, s{S_CI}, 7282\ns_lshr_b32 s53, s53, 16\ns_mul_i32 s53, s53, 9\ns_sub_u32 s{S_CI}, s{S_CI}, s53")
    else:
        a.e(f"s_mov_b32 s{S_CI}, 0")
    a.e(f"s_lshl_b32 s65, s{S_WAVE}, 12\ns_mul_i32 s66, s{S_WAVE}, 5120")
    a.e(f"s_mov_b32 s{S_L}, {LOG2E}\ns_mov_b32 s{S_L+1}, {LOG2E}")
    vx = [V.get(), V.get()]; vw = [V.get() for _ in range(5)]
    swz = V.get()
    a.e(f"v_and_b32 v{t0}, 7, v{lane}\nv_lshrrev_b32 v{t1}, 4, v{lane}\nv_xor_b32 v{t0}, v{t0}, v{t1}\nv_lshlrev_b32 v{swz}, 4, v{t0}")
    a.e(f"v_lshrrev_b32 v{t3}, 3, v{lane}")
    a.e("s_cmp_ge_u32 s49, 24\ns_cbranch_scc1 L_b1")
    a.e(f"v_mul_u32_u24 v{t0}, 1152, v{t3}\nv_add_u32 v{vx[0]}, v{t0}, v{swz}\nv_xor_b32 v{vx[1]}, 64, v{vx[0]}")
    a.e(f"s_lshl_b32 s53, s{S_RB}, 2\ns_add_u32 s53, s53, s{S_WAVE}\ns_mul_i32 s{S_XB}, s53, 36864")
    a.e(f"s_mov_b32 s{S_WSTEP}, {64*3456}")
    a.e(f"s_cmp_ge_u32 s49, 16\ns_cselect_b32 s{S_ROLE}, 1, 0\ns_cbranch_scc1 L_qsetup")
    a.e(f"s_lshl_b32 s{S_CB}, s51, 2\ns_add_u32 s{S_CB}, s{S_CB}, s52\ns_mul_i32 s{S_WB}, s{S_CB}, 144")
    for j in range(5):
        a.e(f"s_mul_i32 s53, s{S_WAVE}, 320\ns_add_u32 s53, s53, {j*64}\nv_add_u32 v{t0}, s53, v{lane}")
        divc(a, t1, t0, 20, 1280)
        a.e(f"v_mul_u32_u24 v{t2}, 20, v{t1}\nv_sub_u32 v{t0}, v{t0}, v{t2}")
        a.e(f"v_mul_u32_u24 v{t1}, 3456, v{t1}")
        divc(a, t2, t0, 5, 20)
        a.e(f"v_mul_u32_u24 v{t3}, 5, v{t2}\nv_sub_u32 v{t0}, v{t0}, v{t3}")
        a.e(f"v_lshlrev_b32 v{t0}, 4, v{t0}\nv_min_u32 v{t0}, 56, v{t0}\nv_add_u32 v{t1}, v{t1}, v{t0}")
        a.e(f"v_and_b32 v{t0}, 1, v{t2}\nv_mul_u32_u24 v{t0}, 1152, v{t0}\nv_lshrrev_b32 v{t2}, 1, v{t2}\nv_mul_u32_u24 v{t2}, 72, v{t2}")
        a.e(f"v_add3_u32 v{vw[j]}, v{t1}, v{t0}, v{t2}\nv_add_u32 v{vw[j]}, 1152, v{vw[j]}")
    a.e("s_branch L_ago")
    a.label("L_qsetup")
    a.e(f"s_lshl_b32 s{S_CB}, s51, 1\ns_and_b32 s53, s52, 1\ns_add_u32 s{S_CB}, s{S_CB}, s53\ns_mul_i32 s{S_WB}, s{S_CB}, 288")
    for j in range(5):
        a.e(f"s_mul_i32 s53, s{S_WAVE}, 320\ns_add_u32 s53, s53, {j*64}\nv_add_u32 v{t0}, s53, v{lane}")
        divc(a, t1, t0, 10, 1280)
        a.e(f"v_mul_u32_u24 v{t2}, 10, v{t1}\nv_sub_u32 v{t0}, v{t0}, v{t2}")
        a.e(f"v_and_b32 v{t2}, 1, v{t1}\nv_lshrrev_b32 v{t1}, 1, v{t1}\nv_mul_u32_u24 v{t1}, 3456, v{t1}\nv_mul_u32_u24 v{t2}, 144, v{t2}")
        a.e(f"v_cmp_gt_u32 vcc, 9, v{t0}\nv_lshlrev_b32 v{t0}, 4, v{t0}\nv_add3_u32 v{t1}, v{t1}, v{t0}, v{t2}")
        a.e(f"v_mov_b32 v{t3}, {OOB}\nv_cndmask_b32 v{vw[j]}, v{t3}, v{t1}, vcc")
    a.label("L_ago")
    k.stamp(7)
    a.e("s_waitcnt lgkmcnt(0)")
    srd(a, R_X, S_AX, 2048*1152); srd(a, R_W, S_W, 576*3456); srd(a, R_WS, S_WS, WS_SIZE); srd(a, R_P, S_WPHI, 32*648)
    k.stamp(1)
    if "--probe" in sys.argv:
        a.e(f"buffer_load_dword v{t0}, v{vx[0]}, s[{R_X}:{R_X+3}], s{S_XB} offen\ns_waitcnt vmcnt(0)")
        k.stamp(8)
        a.e(f"buffer_load_dword v{t0}, v{vw[0]}, s[{R_W}:{R_W+3}], s{S_WB} offen\ns_waitcnt vmcnt(0)")
        k.stamp(9)
        a.e(f"buffer_load_dword v{t0}, v{vx[0]}, s[{R_X}:{R_X+3}], s{S_XB} offen offset:512\ns_waitcnt vmcnt(0)")
        k.stamp(10)
    for c in range(NS - 1):
        for g in dma_chunk(c, vx, vw, 9216): a.e(g)
    a.e(f"s_lshl_b32 s67, s{S_CB}, 2")
    nwp = wphi_dma(a, V, lane, 4, 67, LDS_MISC)
    xa = [V.get() for _ in range(4)]; wa = V.get()
    xs = [V.get() for _ in range(4)]; ws_ = V.get()
    a.e(f"v_and_b32 v{t0}, 31, v{lane}\nv_lshrrev_b32 v{t1}, 5, v{lane}\nv_bfe_u32 v{t2}, v{lane}, 1, 3\nv_xor_b32 v{t1}, v{t1}, v{t2}")
    a.e(f"v_lshlrev_b32 v{t0}, 7, v{t0}\nv_lshl_add_u32 v{t0}, v{t1}, 4, v{t0}\nv_add_u32 v{xa[0]}, s65, v{t0}")
    for ks in range(1, 4): a.e(f"v_xor_b32 v{xa[ks]}, {32*ks}, v{xa[0]}")
    a.e(f"v_lshrrev_b32 v{t0}, 5, v{lane}\nv_bfe_u32 v{t1}, v{lane}, 2, 2\nv_lshl_add_u32 v{t0}, v{t0}, 3, v{t1}\nv_mul_u32_u24 v{t0}, 320, v{t0}")
    a.e(f"v_and_b32 v{t1}, 1, v{lane}\nv_mul_u32_u24 v{t1}, 160, v{t1}\nv_bfe_u32 v{t2}, v{lane}, 4, 1\nv_lshl_add_u32 v{t1}, v{t2}, 4, v{t1}")
    a.e(f"v_bfe_u32 v{t2}, v{lane}, 1, 1\nv_lshl_add_u32 v{t1}, v{t2}, 3, v{t1}\nv_add3_u32 v{wa}, v{t0}, v{t1}, 0\nv_add_u32 v{wa}, 16384, v{wa}")
    acc = V.get(80, 4)
    FX = [V.get(4), V.get(4)]; FW = [V.get(20, 4), V.get(20, 4)]
    def reads(s):
        c, ks = divmod(s, 4); b = s & 1
        r = []
        if ks == 0:
            base = (c % NS) * SLOT
            pre = "\n".join(f"v_add_u32 v{xs[i]}, {base}, v{xa[i]}" for i in range(4)) + f"\nv_add_u32 v{ws_}, {base}, v{wa}\n"
        else: pre = ""
        r.append(pre + f"ds_read_b128 {vr(FX[b],4)}, v{xs[ks]}")
        for t in range(5):
            for u in range(2):
                r.append(f"ds_read_b64_tr_b16 {vr(FW[b]+4*t+2*u,2)}, v{ws_} offset:{(16*ks+4*u)*320 + 32*t}")
        return r
    q = []
    for c in range(NS - 1): q += [("c", c)] * 9
    q += [("p", 0)] * nwp
    def wait_chunk(c, also_p=False):
        last = max(i for i, x in enumerate(q) if x == ("c", c) or (also_p and x[0] == "p"))
        a.e(f"s_waitcnt vmcnt({len(q) - 1 - last})")
    wait_chunk(0); a.e("s_barrier")
    k.stamp(2)
    for r in reads(0): a.e(r)
    pend = []
    for s in range(36):
        c, ks = divmod(s, 4); b = s & 1
        fill = []
        if s + 1 < 36:
            if ks == 3:
                wait_chunk(c + 1, also_p=(c + 1 == NS - 1)); a.e("s_barrier")
                nc = c - 1 + NS
                if c == 0: nc = NS - 1
                elif True: nc = c - 1 + NS
                if nc < 9 and not any(x == ("c", nc) for x in q) :
                    pend = dma_chunk(nc, vx, vw, 9216); q += [("c", nc)] * 9
            fill = reads(s + 1)
        a.e("s_waitcnt lgkmcnt(0)")
        mf = [f"v_mfma_f32_32x32x16_bf16 {vr(acc+16*t,16)}, {vr(FW[b]+4*t,4)}, {vr(FX[b],4)}, {'0' if s == 0 else vr(acc+16*t,16)}" for t in range(5)]
        seq = []
        for t in range(5):
            seq.append(mf[t])
            if t < 3: seq += fill[4*t:4*t+4]
            else:
                for _ in range(2 if t == 3 else 1):
                    if pend: seq.append(pend.pop(0))
        for x in seq: a.e(x)
        if ks == 2:
            while pend: a.e(pend.pop(0))
    k.stamp(3)
    for x in FX: V.put(x, 4)
    for x in FW: V.put(x, 20)
    for x in xa + xs + [wa, ws_]: V.put(x)
    a.e(f"s_cmp_eq_u32 s{S_ROLE}, 1\ns_cbranch_scc1 L_qepi")
    hist_save = list(a.hist)
    import copy
    V2 = copy.deepcopy(V)
    F = wphi_frags(a, V, lane, 2, 2, LDS_MISC)
    pos = lambda kk: kk if kk < 32 else kk + 4
    P = V.get(22, 2)
    PH = V.get(56, 4)
    for X in range(2):
        for i in range(9):
            a.e(f"v_cvt_pk_bf16_f32 v{P+10*X+i}, v{acc+pos(18*X+2*i)}, v{acc+pos(18*X+2*i+1)}")
    for r in (9, 19, 20, 21): a.e(f"v_mov_b32 v{P+r}, 0")
    for X in range(2):
        for i in range(9):
            a.e(f"v_cvt_pk_bf16_f32 v{PH+36+10*X+i}, v{acc+40+pos(18*X+2*i)}, v{acc+40+pos(18*X+2*i+1)}")
        a.e(f"v_mov_b32 v{PH+36+10*X+9}, 0x3f80")
    V.put(acc, 80)
    T = [V.get(16, 4), V.get(16, 4)]; Tx = [V.get(16, 4), V.get(16, 4)]
    for X in range(2):
        for (D, tt) in ((T[X], 0), (Tx[X], 1)):
            for w in range(3):
                a.e(f"v_mfma_f32_32x32x16_bf16 {vr(D,16)}, {vr(F[X][tt][w],4)}, {vr(P+10*X+4*w,4)}, {'0' if w == 0 else vr(D,16)}")
    for X in range(2):
        for tt in range(2):
            for w in range(3): V.put(F[X][tt][w], 4)
    V.put(P, 22)
    k.stamp(4)
    for X in range(2):
        softmax2(a, V, T[X], Tx[X], PH + 18*X, PH + 18*X + 9)
    k.stamp(5)
    for X in range(2): V.put(T[X], 16); V.put(Tx[X], 16)
    a.e(f"v_and_b32 v{t0}, 31, v{lane}\ns_lshl_b32 s53, s{S_WAVE}, 5\nv_add_u32 v{t0}, s53, v{t0}\nv_mul_u32_u24 v{t0}, 464, v{t0}")
    a.e(f"v_lshrrev_b32 v{t1}, 5, v{lane}\nv_mul_u32_u24 v{t1}, 224, v{t1}\nv_add_u32 v{t0}, v{t0}, v{t1}")
    a.e("s_barrier")
    for i in range(14):
        a.e(f"ds_write_b128 v{t0}, {vr(PH+4*i,4)} offset:{16*i}")
    a.e(f"v_bfe_u32 v{t1}, v{lane}, 2, 3\nv_lshrrev_b32 v{t2}, 5, v{lane}\nv_lshl_add_u32 v{t1}, v{t2}, 3, v{t1}\nv_mul_u32_u24 v{t1}, 928, v{t1}")
    a.e(f"v_and_b32 v{t2}, 3, v{lane}\nv_lshl_add_u32 v{t1}, v{t2}, 3, v{t1}")
    a.e(f"s_lshr_b32 s53, s{S_WAVE}, 1\ns_mul_i32 s53, s53, 224\ns_and_b32 s54, s{S_WAVE}, 1\ns_mul_i32 s55, s54, 72\ns_add_u32 s55, s55, s53")
    a.e(f"s_mul_i32 s54, s54, 40\ns_add_u32 s54, s54, s53\ns_add_u32 s54, s54, 144")
    a.e(f"v_add_u32 v{t2}, s54, v{t1}\nv_add_u32 v{t1}, s55, v{t1}")
    a.e("s_waitcnt lgkmcnt(0)\ns_barrier")
    FA = [V.get(12, 4) for _ in range(4)]; FB = [V.get(8, 4) for _ in range(4)]
    KV = V.get(24, 4)
    for ks in range(4):
        for t in range(3):
            for u in range(2):
                a.e(f"ds_read_b64_tr_b16 {vr(FA[ks]+4*t+2*u,2)}, v{t1} offset:{(32*ks+u)*464 + 32*t}")
        for t in range(2):
            for u in range(2):
                a.e(f"ds_read_b64_tr_b16 {vr(FB[ks]+4*t+2*u,2)}, v{t2} offset:{(32*ks+u)*464 + 32*t}")
        if ks >= 1:
            a.e("s_waitcnt lgkmcnt(10)")
            for t in range(3):
                for u in range(2):
                    D = KV + 4*(2*t+u)
                    a.e(f"v_mfma_f32_16x16x32_bf16 {vr(D,4)}, {vr(FA[ks-1]+4*t,4)}, {vr(FB[ks-1]+4*u,4)}, {'0' if ks == 1 else vr(D,4)}")
    a.e("s_waitcnt lgkmcnt(0)")
    for t in range(3):
        for u in range(2):
            D = KV + 4*(2*t+u)
            a.e(f"v_mfma_f32_16x16x32_bf16 {vr(D,4)}, {vr(FA[3]+4*t,4)}, {vr(FB[3]+4*u,4)}, {vr(D,4)}")
    o = [V.get() for _ in range(4)]
    a.e(f"v_and_b32 v{t0}, 15, v{lane}\nv_lshrrev_b32 v{t1}, 4, v{lane}\nv_mul_u32_u24 v{t2}, 320, v{t1}\nv_lshl_add_u32 v{o[0]}, v{t0}, 4, v{t2}")
    a.e(f"v_mov_b32 v{t3}, {OOB}\nv_cmp_gt_u32 vcc, 4, v{t0}\nv_cndmask_b32 v{o[1]}, v{t3}, v{o[0]}, vcc")
    a.e(f"v_cmp_eq_u32 vcc, 0, v{t1}\nv_cndmask_b32 v{o[2]}, v{t3}, v{o[0]}, vcc\nv_cndmask_b32 v{o[3]}, v{t3}, v{o[1]}, vcc")
    a.e(f"s_lshl_b32 s53, s{S_CB}, 1\ns_lshr_b32 s54, s{S_WAVE}, 1\ns_add_u32 s53, s53, s54\ns_lshl_b32 s53, s53, 4\ns_add_u32 s53, s53, s{S_RB}\ns_mul_i32 s53, s53, 5760")
    a.e(f"s_and_b32 s54, s{S_WAVE}, 1\ns_mul_i32 s54, s54, 2880\ns_add_u32 s53, s53, s54\ns_add_u32 s53, s53, {WS_PART}")
    for t in range(3):
        for u in range(2):
            D = KV + 4*(2*t+u)
            a.e(f"buffer_store_dwordx4 {vr(D,4)}, v{o[(2 if t == 2 else 0)+u]}, s[{R_WS}:{R_WS+3}], s53 offen offset:{t*1280 + u*256}")
    k.stamp(6)
    a.e(f"s_branch L_fin_{k.name}")
    vmax = V.max
    V = V2
    a.label("L_qepi"); a.hist = hist_save
    Q = V.get(40, 2)
    for X in range(4):
        for i in range(9):
            a.e(f"v_cvt_pk_bf16_f32 v{Q+10*X+i}, v{acc+18*X+2*i}, v{acc+18*X+2*i+1}")
    a.e(f"v_and_b32 v{t0}, 31, v{lane}\nv_lshrrev_b32 v{t1}, 5, v{lane}\nv_mul_u32_u24 v{t1}, 18432, v{t1}")
    a.e(f"v_lshl_add_u32 v{t2}, v{t0}, 4, v{t1}\nv_lshl_add_u32 v{t3}, v{t0}, 2, v{t1}")
    a.e(f"s_lshl_b32 s53, s{S_RB}, 4\ns_lshl_b32 s54, s{S_CB}, 2\ns_add_u32 s53, s53, s54\ns_lshl_b32 s53, s53, 2\ns_add_u32 s53, s53, s{S_WAVE}\ns_mul_i32 s53, s53, 2304")
    a.e(f"s_add_u32 s53, s53, {WS_Q}\ns_add_u32 s54, s53, 9216")
    for X in range(4):
        so = 53 + (X >> 1)
        for p in range(2):
            a.e(f"buffer_store_dwordx4 {vr(Q+10*X+4*p,4)}, v{t2}, s[{R_WS}:{R_WS+3}], s{so} offen offset:{(X&1)*512 + p*1024}")
        a.e(f"buffer_store_dword v{Q+10*X+8}, v{t3}, s[{R_WS}:{R_WS+3}], s{so} offen offset:{2048 + (X&1)*128}")
    k.stamp(6)
    a.e(f"s_branch L_fin_{k.name}")
    V = Alloc(1, 256)
    for r in [lane, t0, t1, t2, t3] + vx + vw + [swz]: V.free[r] = False
    a.label("L_b1"); a.hist = []
    a.e(f"v_mul_u32_u24 v{t0}, 73728, v{t3}\nv_add_u32 v{vx[0]}, v{t0}, v{swz}\nv_xor_b32 v{vx[1]}, 64, v{vx[0]}")
    a.e(f"s_lshl_b32 s67, s{S_RB}, 2\ns_add_u32 s67, s67, s{S_WAVE}\ns_mul_i32 s{S_XB}, s67, 1152")
    a.e(f"s_mov_b32 s{S_WSTEP}, 128")
    a.e(f"s_lshl_b32 s{S_CB}, s51, 1\ns_and_b32 s53, s52, 1\ns_add_u32 s{S_CB}, s{S_CB}, s53")
    a.e(f"s_and_b32 s53, s{S_WAVE}, 1\ns_mul_i32 s54, s53, 40\ns_mul_i32 s{S_WB}, s{S_CB}, 80\ns_add_u32 s{S_WB}, s{S_WB}, s54\ns_mul_i32 s{S_WB}, s{S_WB}, 1152")
    a.e(f"s_lshl_b32 s53, s53, 6")
    a.e(f"v_mul_u32_u24 v{t0}, 1152, v{t3}\nv_add_u32 v{t0}, v{t0}, v{swz}\nv_xor_b32 v{vw[0]}, s53, v{t0}")
    for j in range(1, 5):
        a.e(f"v_xor_b32 v{vw[j]}, 64, v{vw[j-1]}\nv_add_u32 v{vw[j]}, 9216, v{vw[j]}")
    a.e("s_waitcnt lgkmcnt(0)")
    srd(a, R_X, S_BX, 2048*1152); srd(a, R_WS, S_WS, WS_SIZE)
    a.e(f"s_cmp_ge_u32 s{S_WAVE}, 2\ns_cselect_b32 s54, s{S_HIM}, s{S_HRE}\ns_cselect_b32 s55, s{S_HIM+1}, s{S_HRE+1}")
    srd(a, R_W, 54, 289*1152)
    k.stamp(1)
    for c in range(NS - 1):
        for g in dma_chunk(c, vx, vw, 8*73728): a.e(g)
    la = [V.get(), V.get()]; xs = [V.get(), V.get()]; wsr = [V.get(), V.get()]
    a.e(f"v_and_b32 v{t0}, 15, v{lane}\nv_lshrrev_b32 v{t1}, 4, v{lane}\nv_bfe_u32 v{t2}, v{lane}, 1, 3\nv_xor_b32 v{t1}, v{t1}, v{t2}")
    a.e(f"v_lshlrev_b32 v{t0}, 7, v{t0}\nv_lshl_add_u32 v{la[0]}, v{t1}, 4, v{t0}\nv_xor_b32 v{la[1]}, 64, v{la[0]}")
    TC = [V.get(4), V.get(4)]; TS = [V.get(4), V.get(4)]; TN = [V.get(4), V.get(4)]
    e0, e1, e2, e3 = V.get(), V.get(), V.get(), V.get()
    a.e(f"v_and_b32 v{t0}, 15, v{lane}\nv_lshrrev_b32 v{t1}, 4, v{lane}\nv_lshlrev_b32 v{t1}, 8, v{t1}\nv_add_u32 v{t1}, s67, v{t1}")
    for kt in range(2):
        if kt: a.e(f"v_add_u32 v{t0}, 16, v{t0}")
        for jp in range(4):
            for h, (ec, es) in enumerate(((e0, e1), (e2, e3))):
                j = 2*jp + h
                s1off = 64*(16*(j//4) + j % 4)
                a.e(f"v_add_u32 v{t2}, {s1off}, v{t1}\nv_mul_u32_u24 v{t2}, v{t2}, v{t0}\nv_and_b32 v{t2}, 2047, v{t2}\nv_cvt_f32_u32 v{t2}, v{t2}\nv_mul_f32 v{t2}, 0x3a000000, v{t2}")
                a.e(f"v_cos_f32 v{ec}, v{t2}\nv_sin_f32 v{es}, v{t2}")
            a.e(f"v_cvt_pk_bf16_f32 v{TC[kt]+jp}, v{e0}, v{e2}\nv_cvt_pk_bf16_f32 v{TS[kt]+jp}, v{e1}, v{e3}")
            a.e(f"v_xor_b32 v{TN[kt]+jp}, 0x80008000, v{TS[kt]+jp}")
    acc = V.get(80, 4)
    FX = [V.get(8, 4), V.get(8, 4)]; FW = [V.get(40, 4), V.get(40, 4)]
    def breads(s):
        c, ks = divmod(s, 2); b = s & 1
        r = []
        pre = ""
        if ks == 0:
            base = (c % NS) * SLOT
            pre = f"s_add_u32 s53, s65, {base}\n" + "\n".join(f"v_add_u32 v{xs[i]}, s53, v{la[i]}\nv_add_u32 v{wsr[i]}, {base+16384}, v{la[i]}" for i in range(2)) + "\n"
        for rt in range(2):
            r.append((pre if rt == 0 else "") + f"ds_read_b128 {vr(FX[b]+4*rt,4)}, v{xs[ks]} offset:{2048*rt}")
        for ct in range(10):
            r.append(f"ds_read_b128 {vr(FW[b]+4*ct,4)}, v{wsr[ks]} offset:{2048*ct}")
        return r
    q = []
    for c in range(NS - 1): q += [("c", c)] * 9
    wait_chunk(0); a.e("s_barrier")
    k.stamp(2)
    for r in breads(0): a.e(r)
    pend = []
    for s in range(18):
        c, ks = divmod(s, 2); b = s & 1
        fill = []
        if s + 1 < 18:
            if ks == 1:
                wait_chunk(c + 1); a.e("s_barrier")
                nc = c - 1 + NS
                if nc < 9 and not any(x == ("c", nc) for x in q):
                    pend = dma_chunk(nc, vx, vw, 8*73728); q += [("c", nc)] * 9
            fill = breads(s + 1)
        a.e("s_waitcnt lgkmcnt(0)")
        seq = []
        for i in range(20):
            ct, rt = divmod(i, 2)
            D = acc + 8*ct + 4*rt
            seq.append(f"v_mfma_f32_16x16x32_bf16 {vr(D,4)}, {vr(FX[b]+4*rt,4)}, {vr(FW[b]+4*ct,4)}, {'0' if s == 0 else vr(D,4)}")
            if i < 12 and fill: seq.append(fill.pop(0))
            elif i >= 12 and i % 2 == 0 and pend: seq.append(pend.pop(0))
        for x in seq: a.e(x)
        if ks == 0:
            while pend: a.e(pend.pop(0))
    k.stamp(3)
    for x in FX: V.put(x, 8)
    for x in FW: V.put(x, 40)
    BF = V.get(40, 4)
    for ct in range(10):
        for i in range(4):
            a.e(f"v_cvt_pk_bf16_f32 v{BF+4*ct+i}, v{acc+8*ct+2*i}, v{acc+8*ct+2*i+1}")
    for qq in range(5):
        for kt in range(2):
            Dr = acc + 16*qq + 8*kt; Di = Dr + 4
            X = BF + 4*qq; Y = BF + 4*(5+qq)
            a.e(f"v_mfma_f32_16x16x32_bf16 {vr(Dr,4)}, {vr(TC[kt],4)}, {vr(X,4)}, 0")
            a.e(f"v_mfma_f32_16x16x32_bf16 {vr(Di,4)}, {vr(TN[kt],4)}, {vr(X,4)}, 0")
            a.e(f"v_mfma_f32_16x16x32_bf16 {vr(Dr,4)}, {vr(TS[kt],4)}, {vr(Y,4)}, {vr(Dr,4)}")
            a.e(f"v_mfma_f32_16x16x32_bf16 {vr(Di,4)}, {vr(TC[kt],4)}, {vr(Y,4)}, {vr(Di,4)}")
    a.e(f"v_and_b32 v{t0}, 15, v{lane}\nv_lshrrev_b32 v{t1}, 4, v{lane}\nv_mul_u32_u24 v{t1}, 1280, v{t1}\nv_lshl_add_u32 v{t0}, v{t0}, 2, v{t1}")
    a.e(f"s_mul_i32 s53, s{S_WAVE}, 10240\nv_add_u32 v{t0}, s53, v{t0}")
    a.e("s_barrier")
    GP = V.get(40, 4)
    for qq in range(5):
        for kt in range(2):
            for i in range(4):
                Dr = acc + 16*qq + 8*kt
                r = GP + 8*qq + 4*kt + i
                a.e(f"v_cvt_pk_bf16_f32 v{r}, v{Dr+i}, v{Dr+4+i}")
                a.e(f"ds_write_b32 v{t0}, v{r} offset:{((16*kt+i)*80 + 16*qq)*4}")
    a.e(f"v_lshlrev_b32 v{t1}, 2, v0")
    a.e("s_waitcnt lgkmcnt(0)\ns_barrier")
    for i in range(10):
        a.e(f"ds_read2st64_b32 {vr(acc+4*i,2)}, v{t1} offset0:{4*i} offset1:{4*i+40}")
        a.e(f"ds_read2st64_b32 {vr(acc+4*i+2,2)}, v{t1} offset0:{4*i+80} offset1:{4*i+120}")
        if i == 6: a.e("s_waitcnt lgkmcnt(0)")
    a.e(f"s_mul_i32 s53, s{S_RB}, 320\ns_mul_i32 s54, s{S_CB}, 80\ns_add_u32 s53, s53, s54\ns_lshl_b32 s53, s53, 4\ns_add_u32 s53, s53, {WS_G}")
    go = [V.get() for _ in range(10)]
    for i in range(10):
        a.e(f"v_add_u32 v{t0}, {256*i}, v0")
        divc(a, t2, t0, 80, 2560)
        a.e(f"v_mul_u32_u24 v{t2}, {5120-80}, v{t2}\nv_add_lshl_u32 v{go[i]}, v{t2}, v{t0}, 4")
    a.e("s_waitcnt lgkmcnt(0)")
    for i in range(10):
        a.e(f"buffer_store_dwordx4 {vr(acc+4*i,4)}, v{go[i]}, s[{R_WS}:{R_WS+3}], s53 offen")
    k.stamp(6)
    k.end(0, 256, 256)
    return 163840


def k2(a):
    k = K(a, "p2_kernel", 256)
    V = Alloc(1, 256)
    lane = V.get(); t0 = V.get(); t1 = V.get(); t2 = V.get(); t3 = V.get()
    L_WP, L_KV, L_G = 0, 2048, 8192
    S_HP, S_K1, S_C2 = 63, 64, 65
    a.e(f"v_and_b32 v{lane}, 63, v0\nv_lshrrev_b32 v{t0}, 6, v0\nv_readfirstlane_b32 s{S_WAVE}, v{t0}")
    a.e(f"s_and_b32 s48, s2, 7\ns_lshl_b32 s{S_HP}, s48, 1\ns_bfe_u32 s49, s2, 0x10003\ns_add_u32 s{S_HP}, s{S_HP}, s49\ns_lshr_b32 s{S_RB}, s2, 4")
    a.e(f"s_lshl_b32 s{S_K1}, s48, 2\ns_bfe_u32 s49, s2, 0x20003\ns_add_u32 s{S_K1}, s{S_K1}, s49\ns_lshr_b32 s{S_C2}, s2, 5")
    a.e(f"s_mov_b32 s{S_L}, {LOG2E}\ns_mov_b32 s{S_L+1}, {LOG2E}")
    a.e("s_waitcnt lgkmcnt(0)")
    srd(a, R_WS, S_WS, WS_SIZE); srd(a, R_P, S_WPHI, 32*648); srd(a, R_OUT, S_OUT, 2048*2304)
    a.e(f"s_lshl_b32 s67, s{S_HP}, 1")
    nwp = wphi_dma(a, V, lane, 2, 67, L_WP)
    Q = V.get(12, 4)
    a.e(f"s_lshl_b32 s53, s{S_RB}, 4\ns_add_u32 s53, s53, s{S_HP}\ns_lshl_b32 s53, s53, 2\ns_add_u32 s53, s53, s{S_WAVE}\ns_mul_i32 s53, s53, 2304\ns_add_u32 s53, s53, {WS_Q}")
    a.e(f"v_lshlrev_b32 v{t0}, 4, v{lane}\nv_lshlrev_b32 v{t1}, 2, v{lane}")
    a.e(f"buffer_load_dwordx4 {vr(Q,4)}, v{t0}, s[{R_WS}:{R_WS+3}], s53 offen")
    a.e(f"buffer_load_dwordx4 {vr(Q+4,4)}, v{t0}, s[{R_WS}:{R_WS+3}], s53 offen offset:1024")
    a.e(f"buffer_load_dword v{Q+8}, v{t1}, s[{R_WS}:{R_WS+3}], s53 offen offset:2048")
    for i in (9, 10, 11): a.e(f"v_mov_b32 v{Q+i}, 0")
    PL = V.get(128, 4)
    u0, u1 = V.get(), V.get()
    a.e(f"v_lshlrev_b32 v{u0}, 4, v0\nv_add_u32 v{t0}, 4096, v{u0}\nv_mov_b32 v{t3}, {OOB}\nv_cmp_gt_u32 vcc, 104, v0\nv_cndmask_b32 v{u1}, v{t3}, v{t0}, vcc")
    a.e(f"s_mul_i32 s53, s{S_HP}, {16*5760}\ns_add_u32 s53, s53, {WS_PART}")
    for r in range(16):
        a.e(f"buffer_load_dwordx4 {vr(PL+4*r,4)}, v{u0}, s[{R_WS}:{R_WS+3}], s53 offen")
        a.e(f"buffer_load_dwordx4 {vr(PL+64+4*r,4)}, v{u1}, s[{R_WS}:{R_WS+3}], s53 offen")
        if r < 15: a.e("s_add_u32 s53, s53, 5760")
    ga, gb = V.get(), V.get()
    a.e(f"v_bfe_u32 v{t0}, v{lane}, 2, 2\nv_and_b32 v{t1}, 3, v{lane}\nv_lshl_add_u32 v{ga}, v{t0}, 3, v{t1}\nv_and_b32 v{gb}, 15, v{lane}\nv_add_u32 v{gb}, 64, v{gb}")
    a.e(f"s_mul_i32 s53, s{S_C2}, 72\ns_cmp_ge_u32 s{S_C2}, 4\ns_cselect_b32 s54, -16, 16\ns_cselect_b32 s55, 576, 0")
    a.e(f"s_mul_i32 s53, s53, s54\ns_lshl_b32 s55, s55, 4\ns_add_u32 s53, s53, s55")
    a.e(f"v_lshrrev_b32 v{t0}, 4, v{lane}\nv_mul_u32_u24 v{t0}, 5120, v{t0}\nv_add_u32 v{t0}, s53, v{t0}")
    a.e(f"v_mul_lo_u32 v{ga}, v{ga}, s54\nv_mul_lo_u32 v{gb}, v{gb}, s54\nv_add_u32 v{ga}, v{ga}, v{t0}\nv_add_u32 v{gb}, v{gb}, v{t0}")
    a.e(f"v_and_b32 v{t1}, 8, v{lane}\nv_cmp_eq_u32 vcc, 0, v{t1}\nv_cndmask_b32 v{gb}, v{t3}, v{gb}, vcc")
    a.e(f"s_lshl_b32 s55, s{S_K1}, 2\ns_add_u32 s55, s55, s{S_WAVE}\ns_mul_i32 s55, s55, {4*5120}\ns_add_u32 s55, s55, {WS_G}")
    a.e(f"s_lshl_b32 s56, s{S_WAVE}, 10")
    for mt in range(5):
        if mt < 4:
            a.e(f"s_mul_i32 s57, s54, {32*(mt>>1) + 4*(mt&1)}\nv_add_u32 v{t1}, s57, v{ga}")
        a.e(f"s_add_u32 m0, s56, {L_G + mt*4096}")
        a.e(f"buffer_load_dwordx4 v{t1 if mt < 4 else gb}, s[{R_WS}:{R_WS+3}], s55 offen lds")
    V.put(ga); V.put(gb)
    k.stamp(1)
    a.e(f"v_mov_b32 v{t0}, 0\nv_mov_b32 v{t1}, 0\nv_lshlrev_b32 v{t2}, 3, v0")
    a.e(f"ds_write_b64 v{t2}, {vr(t0,2)} offset:{L_KV}\nds_write_b64 v{t2}, {vr(t0,2)} offset:{L_KV+2048}")
    a.e(f"s_waitcnt vmcnt({3+32+5}) lgkmcnt(0)\ns_barrier")
    F = wphi_frags(a, V, lane, 1, 1, L_WP)
    a.e(f"s_waitcnt vmcnt({32+5})")
    T = V.get(16, 4); Tx = V.get(16, 4)
    for (D, tt) in ((T, 0), (Tx, 1)):
        for w in range(3):
            a.e(f"v_mfma_f32_32x32x16_bf16 {vr(D,16)}, {vr(F[0][tt][w],4)}, {vr(Q+4*w,4)}, {'0' if w == 0 else vr(D,16)}")
    for tt in range(2):
        for w in range(3): V.put(F[0][tt][w], 4)
    V.put(Q, 12)
    R = V.get(22, 2)
    softmax2(a, V, T, Tx, R, R + 10)
    for r in (9, 19, 20, 21): a.e(f"v_mov_b32 v{R+r}, 0")
    for j in range(9): a.e(f"v_permlane32_swap_b32 v{R+j}, v{R+10+j}")
    k.stamp(2)
    for r in range(1, 16):
        a.e(f"s_waitcnt vmcnt({5 + 2*(15-r)})")
        for h in range(2):
            for p in range(2):
                a.e(f"v_pk_add_f32 {vr(PL+64*h+2*p,2)}, {vr(PL+64*h+2*p,2)}, {vr(PL+64*h+4*r+2*p,2)}")
    k.stamp(3)
    for h in range(2):
        a.e(f"v_add_u32 v{t0}, {256*h}, v0")
        divc(a, t1, t0, 20, 512)
        a.e(f"v_mul_u32_u24 v{t2}, 20, v{t1}\nv_sub_u32 v{t0}, v{t0}, v{t2}\nv_mul_u32_u24 v{t0}, 96, v{t0}")
        a.e(f"v_cmp_le_u32 vcc, 9, v{t1}\nv_subrev_u32 v{t2}, 9, v{t1}\nv_cndmask_b32 v{t1}, v{t1}, v{t2}, vcc\nv_add_u32 v{t2}, 1920, v{t0}\nv_cndmask_b32 v{t0}, v{t0}, v{t2}, vcc")
        a.e(f"v_lshl_add_u32 v{t0}, v{t1}, 3, v{t0}\nv_add_u32 v{t2}, 12, v{t0}")
        a.e(f"v_cmp_le_u32 vcc, 5, v{t1}\nv_cndmask_b32 v{t3}, v{t0}, v{t2}, vcc\nv_cmp_le_u32 vcc, 4, v{t1}\nv_cndmask_b32 v{t0}, v{t0}, v{t2}, vcc")
        a.e(f"v_cvt_pk_bf16_f32 v{PL+64*h}, v{PL+64*h}, v{PL+64*h+1}\nv_cvt_pk_bf16_f32 v{PL+64*h+1}, v{PL+64*h+2}, v{PL+64*h+3}")
        if h: a.e(f"v_cmp_gt_u32 vcc, 104, v0\ns_and_saveexec_b64 s[54:55], vcc")
        a.e(f"ds_write_b32 v{t3}, v{PL+64*h} offset:{L_KV}\nds_write_b32 v{t0}, v{PL+64*h+1} offset:{L_KV+4}")
        if h: a.e("s_mov_b64 exec, s[54:55]")
    V.put(PL, 128)
    DF = V.get(16, 4)
    e0, e1 = V.get(), V.get()
    a.e(f"v_and_b32 v{t0}, 15, v{lane}\ns_lshl_b32 s53, s{S_WAVE}, 4\nv_add_u32 v{t0}, s53, v{t0}\nv_lshrrev_b32 v{t1}, 4, v{lane}\nv_lshlrev_b32 v{t1}, 2, v{t1}")
    for ks in range(4):
        for jj in range(4):
            a.e(f"v_add_u32 v{t2}, {16*ks+jj}, v{t1}\nv_mul_u32_u24 v{t2}, v{t2}, v{t0}\nv_and_b32 v{t2}, 63, v{t2}\nv_cvt_f32_u32 v{t2}, v{t2}\nv_mul_f32 v{t2}, 0x3c800000, v{t2}")
            a.e(f"v_cos_f32 v{e0}, v{t2}\nv_sin_f32 v{e1}, v{t2}\nv_cvt_pk_bf16_f32 v{DF+4*ks+jj}, v{e0}, v{e1}")
    V.put(e0); V.put(e1)
    a.e(f"v_bfe_u32 v{t0}, v{lane}, 3, 2\nv_and_b32 v{t1}, 3, v{lane}\nv_lshl_add_u32 v{t0}, v{t0}, 2, v{t1}\nv_bfe_u32 v{t1}, v{lane}, 2, 1")
    a.e(f"v_lshl_add_u32 v{t2}, v{t1}, 3, v{t0}\nv_lshl_add_u32 v{t1}, v{t1}, 1, 8\nv_cmp_lt_u32 vcc, v{t0}, v{t1}\nv_cndmask_b32 v{t2}, 19, v{t2}, vcc")
    a.e(f"v_cmp_ne_u32 vcc, 10, v{t0}\nv_cndmask_b32 v{t2}, 18, v{t2}, vcc\nv_mul_u32_u24 v{t2}, 96, v{t2}\nv_lshrrev_b32 v{t0}, 5, v{lane}\nv_mad_u32_u24 v{t2}, v{t0}, 48, v{t2}")
    a.e("s_waitcnt vmcnt(0) lgkmcnt(0)\ns_barrier")
    KF = V.get(24, 4)
    for X in range(2):
        for w in range(3):
            a.e(f"ds_read_b128 {vr(KF+12*X+4*w,4)}, v{t2} offset:{L_KV + 1920*X + 16*w}")
    GF = V.get(80, 4)
    a.e(f"v_lshlrev_b32 v{t3}, 4, v{lane}")
    for i in range(8): a.e(f"ds_read_b128 {vr(GF+4*i,4)}, v{t3} offset:{L_G + 1024*i}")
    a.e("s_waitcnt lgkmcnt(8)")
    for X, D in enumerate((T, Tx)):
        for w in range(3):
            a.e(f"v_mfma_f32_32x32x16_bf16 {vr(D,16)}, {vr(KF+12*X+4*w,4)}, {vr(R+10*X+4*w,4)}, {'0' if w == 0 else vr(D,16)}")
    a.e("s_waitcnt lgkmcnt(0)")
    for i in range(8, 20): a.e(f"ds_read_b128 {vr(GF+4*i,4)}, v{t3} offset:{L_G + 1024*i}")
    a.e(f"v_bfe_u32 v{t0}, v{lane}, 4, 1\nv_lshlrev_b32 v{t1}, 14, v{t0}\nv_lshlrev_b32 v{t0}, 11, v{t0}\nv_and_b32 v{t2}, 15, v{lane}\nv_lshl_add_u32 v{t1}, v{t2}, 4, v{t1}\nv_lshl_add_u32 v{t0}, v{t2}, 3, v{t0}")
    a.e(f"v_lshrrev_b32 v{t2}, 5, v{lane}\nv_lshl_add_u32 v{t1}, v{t2}, 8, v{t1}\nv_cmp_eq_u32 vcc, 1, v{t2}\nv_mov_b32 v{t2}, {OOB}\nv_cndmask_b32 v{t0}, v{t2}, v{t0}, vcc")
    a.e(f"s_lshl_b32 s53, s{S_RB}, 2\ns_add_u32 s53, s53, s{S_WAVE}\ns_lshl_b32 s53, s53, 5\ns_add_u32 s53, s53, s{S_HP}")
    a.e(f"s_lshl_b32 s54, s53, 7\ns_add_u32 s54, s54, {WS_OL}\ns_lshl_b32 s53, s53, 10\ns_add_u32 s53, s53, {WS_O}")
    OP = V.get(12, 4)
    for X, D in enumerate((T, Tx)):
        a.e(f"v_add_f32 v{D+10}, 0x358637bd, v{D+10}\nv_rcp_f32 v{D+10}, v{D+10}")
    for X, D in enumerate((T, Tx)):
        for i in range(5):
            a.e(f"v_pk_mul_f32 {vr(D+2*i,2)}, {vr(D+2*i,2)}, {vr(D+10,2)} op_sel_hi:[1,0]")
        for i in range(4):
            a.e(f"v_cvt_pk_bf16_f32 v{OP+4*X+i}, v{D+2*i}, v{D+2*i+1}")
        a.e(f"v_cvt_pk_bf16_f32 v{OP+8+X}, v{D+8}, v{D+9}")
        a.e(f"buffer_store_dwordx4 {vr(OP+4*X,4)}, v{t1}, s[{R_WS}:{R_WS+3}], s53 offen offset:{512*X}")
    a.e(f"buffer_store_dwordx2 {vr(OP+8,2)}, v{t0}, s[{R_WS}:{R_WS+3}], s54 offen")
    k.stamp(4)
    Y = V.get(20, 4)
    a.e("s_waitcnt lgkmcnt(0)")
    for ks in range(4):
        for mt in range(5):
            a.e(f"v_mfma_f32_16x16x32_bf16 {vr(Y+4*mt,4)}, {vr(GF+4*(4*mt+ks),4)}, {vr(DF+4*ks,4)}, {'0' if ks == 0 else vr(Y+4*mt,4)}")
    a.e(f"v_and_b32 v{t0}, 15, v{lane}\ns_lshl_b32 s53, s{S_WAVE}, 9\ns_add_u32 s53, s53, s{S_K1}\nv_lshl_add_u32 v{t0}, v{t0}, 5, s53")
    a.e(f"s_cmp_ge_u32 s{S_C2}, 4\ns_cselect_b32 s54, -1, 1\nv_mul_lo_u32 v{t0}, v{t0}, s54\nv_and_b32 v{t0}, 2047, v{t0}\nv_mul_u32_u24 v{t0}, 2304, v{t0}")
    a.e(f"v_lshrrev_b32 v{t2}, 4, v{lane}\nv_lshl_add_u32 v{t1}, v{t2}, 3, v{t0}\nv_lshl_add_u32 v{t0}, v{t2}, 4, v{t0}")
    a.e(f"v_cmp_gt_u32 vcc, 2, v{t2}\nv_mov_b32 v{t2}, {OOB}\nv_cndmask_b32 v{t1}, v{t2}, v{t1}, vcc")
    a.e(f"s_mul_i32 s53, s{S_C2}, 144\ns_add_u32 s53, s53, 1152")
    YP = V.get(12, 4)
    for i in range(10): a.e(f"v_cvt_pk_bf16_f32 v{YP+i}, v{Y+2*i}, v{Y+2*i+1}")
    a.e(f"buffer_store_dwordx4 {vr(YP,4)}, v{t0}, s[{R_OUT}:{R_OUT+3}], s53 offen")
    a.e(f"buffer_store_dwordx4 {vr(YP+4,4)}, v{t0}, s[{R_OUT}:{R_OUT+3}], s53 offen offset:64")
    a.e(f"buffer_store_dwordx2 {vr(YP+8,2)}, v{t1}, s[{R_OUT}:{R_OUT+3}], s53 offen offset:128")
    k.stamp(5)
    k.end(1, 256, 256)
    return 32768

def k3(a):
    k = K(a, "p3_kernel", 256)
    V = Alloc(1, 256)
    lane = V.get(); t0 = V.get(); t1 = V.get(); t2 = V.get(); t3 = V.get()
    S_RQ, S_C3 = 62, 63
    a.e(f"v_and_b32 v{lane}, 63, v0\nv_lshrrev_b32 v{t0}, 6, v0\nv_readfirstlane_b32 s{S_WAVE}, v{t0}")
    a.e(f"s_and_b32 s48, s2, 7\ns_lshl_b32 s{S_RQ}, s48, 2\ns_bfe_u32 s49, s2, 0x20003\ns_add_u32 s{S_RQ}, s{S_RQ}, s49\ns_lshr_b32 s{S_C3}, s2, 5")
    vw = [V.get() for _ in range(5)]
    for j in range(5):
        a.e(f"v_add_u32 v{t0}, {64*j}, v{lane}")
        divc(a, t1, t0, 10, 320)
        a.e(f"v_mul_u32_u24 v{t2}, 10, v{t1}\nv_sub_u32 v{t0}, v{t0}, v{t2}\nv_mul_u32_u24 v{t1}, 1152, v{t1}\nv_cmp_gt_u32 vcc, 9, v{t0}\nv_lshl_add_u32 v{t1}, v{t0}, 4, v{t1}")
        a.e(f"v_mov_b32 v{t3}, {OOB}\nv_cndmask_b32 v{vw[j]}, v{t3}, v{t1}, vcc")
    a.e("s_waitcnt lgkmcnt(0)")
    srd(a, R_WS, S_WS, WS_SIZE); srd(a, R_W, S_WO, 576*1152); srd(a, R_OUT, S_OUT, 2048*2304)
    a.e(f"s_mul_i32 s53, s{S_C3}, 144\ns_mul_i32 s54, s{S_WAVE}, {32*1152}\ns_add_u32 s53, s53, s54\ns_mul_i32 s54, s{S_WAVE}, 5120")
    k.stamp(1)
    for gi in range(5):
        for j in range(5):
            a.e(f"s_add_u32 m0, s54, {gi*20480 + j*1024}")
            a.e(f"buffer_load_dwordx4 v{vw[j]}, s[{R_W}:{R_W+3}], s53 offen lds")
        a.e(f"s_add_u32 s53, s53, {128*1152}")
    OF = V.get(72, 4)
    a.e(f"s_lshl_b32 s53, s{S_RQ}, 2\ns_add_u32 s53, s53, s{S_WAVE}\ns_lshl_b32 s54, s53, 11\ns_add_u32 s54, s54, {WS_OL}\ns_lshl_b32 s53, s53, 14\ns_add_u32 s53, s53, {WS_O}")
    a.e(f"v_lshlrev_b32 v{t0}, 4, v{lane}\nv_and_b32 v{t1}, 15, v{lane}\nv_lshrrev_b32 v{t2}, 4, v{lane}\nv_lshlrev_b32 v{t2}, 8, v{t2}\nv_lshl_add_u32 v{t1}, v{t1}, 3, v{t2}")
    for s in range(16):
        a.e(f"buffer_load_dwordx4 {vr(OF+4*s,4)}, v{t0}, s[{R_WS}:{R_WS+3}], s53 offen offset:{(s&3)*1024}")
        if s & 3 == 3: a.e("s_add_u32 s53, s53, 4096")
    for u in range(2):
        for h in range(2):
            a.e(f"buffer_load_dwordx2 {vr(OF+64+4*u+2*h,2)}, v{t1}, s[{R_WS}:{R_WS+3}], s54 offen offset:{1024*u + 128*h}")
    am, a4, lm, l4 = V.get(), V.get(), V.get(), V.get()
    a.e(f"v_lshrrev_b32 v{t0}, 5, v{lane}\nv_mul_u32_u24 v{t0}, 18, v{t0}\nv_bfe_u32 v{t1}, v{lane}, 4, 1\nv_lshl_add_u32 v{t0}, v{t1}, 3, v{t0}\nv_bfe_u32 v{t1}, v{lane}, 2, 2\nv_add_u32 v{t0}, v{t0}, v{t1}\nv_mul_u32_u24 v{t0}, 160, v{t0}")
    a.e(f"v_and_b32 v{t2}, 3, v{lane}\nv_lshl_add_u32 v{am}, v{t2}, 4, v{t0}\nv_lshl_add_u32 v{a4}, v{t2}, 3, v{t0}")
    a.e(f"v_lshrrev_b32 v{t0}, 4, v{lane}\nv_mul_u32_u24 v{t0}, 72, v{t0}\nv_bfe_u32 v{t1}, v{lane}, 3, 1\nv_mad_u32_u24 v{t0}, v{t1}, 18, v{t0}\nv_bfe_u32 v{t1}, v{lane}, 2, 1\nv_add3_u32 v{t0}, v{t0}, v{t1}, 16\nv_mul_u32_u24 v{t0}, 160, v{t0}")
    a.e(f"v_lshl_add_u32 v{lm}, v{t2}, 4, v{t0}\nv_lshl_add_u32 v{l4}, v{t2}, 3, v{t0}")
    am2, a42 = V.get(), V.get()
    a.e(f"v_add_u32 v{am2}, {8*5760}, v{am}\nv_add_u32 v{a42}, {8*5760}, v{a4}")
    a.e("s_waitcnt vmcnt(20)\ns_barrier")
    k.stamp(2)
    FW = [V.get(20, 4), V.get(20, 4)]
    Y = V.get(20, 4)
    def rd(s):
        r = []
        for mt in range(5):
            for uu in range(2):
                co = (64*(mt>>1) + 8*(mt&1)) if mt < 4 else 128
                if s < 16:
                    ad = (am if s < 8 else am2) if mt < 4 else (a4 if s < 8 else a42)
                    off = (s & 7)*5760 + uu*640 + co
                else:
                    ad = lm if mt < 4 else l4
                    off = (8*(s-16) + uu)*5760 + co
                r.append(f"ds_read_b64_tr_b16 {vr(FW[s&1]+4*mt+2*uu,2)}, v{ad} offset:{off}")
        return r
    for x in rd(0): a.e(x)
    for s in range(18):
        fill = rd(s+1) if s < 17 else []
        left = (19 - s) if s < 16 else (2 if s == 16 else 0)
        a.e(f"s_waitcnt vmcnt({left}) lgkmcnt(0)")
        for mt in range(5):
            a.e(f"v_mfma_f32_16x16x32_bf16 {vr(Y+4*mt,4)}, {vr(FW[s&1]+4*mt,4)}, {vr(OF+4*s,4)}, {'0' if s == 0 else vr(Y+4*mt,4)}")
            for x in fill[3*mt:3*mt+3]: a.e(x)
    k.stamp(3)
    a.e(f"v_and_b32 v{t0}, 15, v{lane}\nv_mul_u32_u24 v{t0}, 2304, v{t0}")
    a.e(f"v_lshrrev_b32 v{t2}, 4, v{lane}\nv_lshl_add_u32 v{t1}, v{t2}, 3, v{t0}\nv_lshl_add_u32 v{t0}, v{t2}, 4, v{t0}")
    a.e(f"v_cmp_gt_u32 vcc, 2, v{t2}\nv_mov_b32 v{t2}, {OOB}\nv_cndmask_b32 v{t1}, v{t2}, v{t1}, vcc")
    a.e(f"s_lshl_b32 s53, s{S_RQ}, 2\ns_add_u32 s53, s53, s{S_WAVE}\ns_mul_i32 s53, s53, {16*2304}\ns_mul_i32 s54, s{S_C3}, 144\ns_add_u32 s53, s53, s54")
    YP = V.get(12, 4)
    for i in range(10): a.e(f"v_cvt_pk_bf16_f32 v{YP+i}, v{Y+2*i}, v{Y+2*i+1}")
    a.e(f"buffer_store_dwordx4 {vr(YP,4)}, v{t0}, s[{R_OUT}:{R_OUT+3}], s53 offen")
    a.e(f"buffer_store_dwordx4 {vr(YP+4,4)}, v{t0}, s[{R_OUT}:{R_OUT+3}], s53 offen offset:64")
    a.e(f"buffer_store_dwordx2 {vr(YP+8,2)}, v{t1}, s[{R_OUT}:{R_OUT+3}], s53 offen offset:128")
    k.stamp(4)
    k.end(2, 256, 256)
    return 102400

def kdiag(a, spec):
    name = "diag_kernel"
    a.raw(f".globl {name}\n.p2align 8\n.type {name},@function\n{name}:")
    a.hist = []
    a.e("s_cmp_ge_u32 s2, 1\ns_cbranch_scc1 L_end_diag")
    a.e("s_load_dwordx2 s[14:15], s[0:1], 88\ns_waitcnt lgkmcnt(0)")
    kind, slot, wg, idx = spec
    a.e(f"s_add_u32 s14, s14, {WS_STAMP + slot*(1<<20) + wg*256}\ns_addc_u32 s15, s15, 0")
    a.e("s_load_dwordx16 s[16:31], s[14:15], 0\ns_memrealtime s[4:5]\ns_waitcnt lgkmcnt(0)")
    if kind == "none": a.e("s_mov_b32 s6, 0")
    elif kind == "const": a.e(f"s_mov_b32 s6, {idx}")
    elif kind == "now": a.e(f"s_sub_u32 s6, s4, s29\ns_mul_i32 s6, s6, {AMP}")
    elif kind == "cyc": a.e(f"s_mul_i32 s6, s{16+idx}, {6554*AMP}\ns_lshr_b32 s6, s6, 16")
    elif kind == "rt": a.e(f"s_sub_u32 s6, s28, s29\ns_mul_i32 s6, s6, {AMP}")
    a.e("s_min_u32 s6, s6, 20000\ns_add_u32 s6, s6, s4\ns_add_u32 s6, s6, 300")
    a.label("L_diag_spin")
    a.e("s_memrealtime s[8:9]\ns_waitcnt lgkmcnt(0)\ns_sub_u32 s10, s8, s6\ns_cmp_lt_i32 s10, 0\ns_cbranch_scc1 L_diag_spin")
    a.label("L_end_diag")
    a.e("s_endpgm")
    a.raw(f""".section .rodata,"a"
.p2align 6
.amdhsa_kernel {name}
  .amdhsa_next_free_vgpr 8
  .amdhsa_next_free_sgpr 48
  .amdhsa_accum_offset 8
  .amdhsa_group_segment_fixed_size 0
  .amdhsa_kernarg_size 96
  .amdhsa_user_sgpr_count 2
  .amdhsa_user_sgpr_kernarg_segment_ptr 1
  .amdhsa_system_sgpr_workgroup_id_x 1
.end_amdhsa_kernel
.text""")

def header(launches):
    s = open(f"cdna_kernels/{NAME}.s.ref").read().split("; Override launch")[0]
    if len(launches) == 1 and "--list" not in sys.argv:
        (k, g, b, lds) = launches[0]
        s += f"; @launch grid=({g},1,1) block=({b},1,1) lds={lds}\n"
        launches = []
    for (k, g, b, lds) in launches:
        s += f"; @launch kernel={k} grid=({g},1,1) block=({b},1,1) lds={lds}\n"
    s += '.amdgcn_target "amdgcn-amd-amdhsa--gfx950"\n.text\n'
    return s

if __name__ == "__main__":
    STAMPS = "--stamps" in sys.argv
    FUSED = "--fused" in sys.argv
    a = Asm()
    l1 = k1(a, (2, 2))
    l2 = k2(a)
    l3 = k3(a)
    out = sys.argv[1]
    L = [("p1_kernel", 256, 256, l1), ("p2_kernel", 256, 256, l2), ("p3_kernel", 256, 256, l3)]
    if FUSED: L = [(NAME + "_kernel", 256, 256, l1)]
    for x in sys.argv:
        if x.startswith("--diag="):
            p = x[7:].split(",")
            kdiag(a, (p[0], int(p[1]), int(p[2]), int(p[3]))); L.append(("diag_kernel", 1, 64, 0))
    open(out, "w").write(header(L) + a.text())
    print("instrs", a.count, "nops", a.nops)
```
